```python
import torch

def _softmax(x, axis=-1):
    return torch.softmax(x, dim=axis)
def _gelu(x):
    return torch.nn.functional.gelu(x, approximate="tanh")
def _silu(x):
    return torch.nn.functional.silu(x)
def _sigmoid(x):
    return torch.sigmoid(x)
def _layernorm(x, axis=-1, eps=1e-5):
    m = x.mean(dim=axis, keepdim=True)
    v = x.var(dim=axis, keepdim=True, unbiased=False)
    return (x - m) / torch.sqrt(v + eps)
def _scatter_add(tgt, idx, src, axis=0):
    return tgt.clone().index_add_(axis, idx, src)
def _segment_sum(src, seg, n):
    out = torch.zeros((n,) + src.shape[1:], dtype=src.dtype)
    return out.index_add_(0, seg, src)
def _pad(x, pw):
    flat = tuple(v for pair in reversed(pw) for v in pair)
    return torch.nn.functional.pad(x, flat)

kernel_name = 'concat_heads__ssm_conv_s4__grouped_kv_mqa__prompt'

def setup_inputs():

    _w = (lambda a: (lambda t: t.to(torch.bfloat16) if t.is_floating_point() else t)(torch.as_tensor(a)))
    def _A_setup():
        B, L, D, N = 1, 2048, 512, 128
        A_re = -(lambda _x: torch.exp(torch.as_tensor(_x)))((lambda *s: torch.randn(*s, dtype=torch.bfloat16) * 3.2)(D, N))
        A_im = torch.pi * (lambda *s: torch.randn(*s, dtype=torch.bfloat16) * 0.05)(D, N)
        B_re = (lambda *s: torch.randn(*s, dtype=torch.bfloat16) * 0.1)(D, N)
        B_im = (lambda *s: torch.randn(*s, dtype=torch.bfloat16) * 0.1)(D, N)
        C_re = (lambda *s: torch.randn(*s, dtype=torch.bfloat16) * 0.1)(D, N)
        C_im = (lambda *s: torch.randn(*s, dtype=torch.bfloat16) * 0.1)(D, N)
        log_dt = (lambda *s: torch.randn(*s, dtype=torch.bfloat16) * 0.05)(D) * 0.5 - 4.0
        Dskip = (lambda *s: torch.randn(*s, dtype=torch.bfloat16) * 0.05)(D)
        return {
            "u": _w((lambda *s: torch.randn(*s, dtype=torch.bfloat16) * 0.05)(B, L, D)),
            "A_re": _w(A_re),
            "A_im": _w(A_im),
            "B_re": _w(B_re),
            "B_im": _w(B_im),
            "C_re": _w(C_re),
            "C_im": _w(C_im),
            "log_dt": _w(log_dt),
            "Dskip": _w(Dskip),
        }
    _A_in = _A_setup()

    def _B_setup():
        B, S, D, H = 1, 2048, 512, 32
        Dh = D // H
        return {
            "x": _w((lambda *s: torch.randn(*s, dtype=torch.bfloat16) * 0.05)(B, S, D)),
            "wq": _w((lambda *s: torch.randn(*s, dtype=torch.bfloat16) * 0.8)(D, H * Dh)),
            "wk": _w((lambda *s: torch.randn(*s, dtype=torch.bfloat16) * 0.8)(D, Dh)),
            "wv": _w((lambda *s: torch.randn(*s, dtype=torch.bfloat16) * 0.05)(D, Dh)),
            "wo": _w((lambda *s: torch.randn(*s, dtype=torch.bfloat16) * 0.05)(H * Dh, D)),
        }
    _B_in = _B_setup()

    return {
        "A_u": _A_in["u"],
        "A_A_re": _A_in["A_re"],
        "A_A_im": _A_in["A_im"],
        "A_B_re": _A_in["B_re"],
        "A_B_im": _A_in["B_im"],
        "A_C_re": _A_in["C_re"],
        "A_C_im": _A_in["C_im"],
        "A_log_dt": _A_in["log_dt"],
        "A_Dskip": _A_in["Dskip"],
        "B_x": _B_in["x"],
        "B_wq": _B_in["wq"],
        "B_wk": _B_in["wk"],
        "B_wv": _B_in["wv"],
        "B_wo": _B_in["wo"],
    }

def reference(A_u, A_A_re, A_A_im, A_B_re, A_B_im, A_C_re, A_C_im, A_log_dt, A_Dskip, B_x, B_wq, B_wk, B_wv, B_wo):
    def _A_ref(u, A_re, A_im, B_re, B_im, C_re, C_im, log_dt, Dskip):
        Bsz, L, D = u.shape
        dt = torch.exp(log_dt)[:, None]
        A = A_re + 1j * A_im
        Bc = B_re + 1j * B_im
        Cc = C_re + 1j * C_im
        logdA = dt * A
        dB = dt * Bc
        l = (lambda x, dt: x.to(dt))(torch.arange(L), A_re.dtype)
        P = torch.exp(logdA[:, :, None] * l[None, None, :])
        K = torch.einsum("dn,dnl,dn->dl", Cc, P, dB).real
        L2 = 2 * L
        Kp = _pad(K, ((0, 0), (0, L)))
        up = (lambda x, *d: x.permute(*d))(u, 0, 2, 1)
        up = _pad(up, ((0, 0), (0, 0), (0, L)))
        Kf = (lambda x, axes=(-2,-1): torch.fft.rfft2(x.float(), dim=axes))(Kp[:, None, :], axes=(-2, -1))
        Uf = (lambda x, axes=(-2,-1): torch.fft.rfft2(x.float(), dim=axes))(up[:, :, None, :], axes=(-2, -1))
        Yf = Uf * Kf[None, :, :, :]
        y = (lambda x, s, axes=(-2,-1): torch.fft.irfft2(x, s=s, dim=axes).to(torch.bfloat16))(Yf, (1, L2), axes=(-2, -1))[:, :, 0, :L]
        y = (lambda x, *d: x.permute(*d))(y, 0, 2, 1) + u * Dskip[None, None, :]
        return y

    def _B_ref(x, wq, wk, wv, wo):
        B, S, D = x.shape
        H = 32
        Dh = D // H
        q = (lambda x, *d: x.permute(*d))((x @ wq).reshape(B, S, H, Dh), 0, 2, 1, 3)
        k = x @ wk
        v = x @ wv
        scores = torch.einsum("bhqd,bkd->bhqk", q, k) * (Dh ** -0.5)
        p = _softmax(scores, axis=-1)
        o = torch.einsum("bhqk,bkd->bhqd", p, v)
        return (lambda x, *d: x.permute(*d))(o, 0, 2, 1, 3).reshape(B, S, H * Dh) @ wo

    a = _A_ref(A_u, A_A_re, A_A_im, A_B_re, A_B_im, A_C_re, A_C_im, A_log_dt, A_Dskip)
    b = _B_ref(B_x, B_wq, B_wk, B_wv, B_wo)
    return torch.concatenate([a, b], axis=-1)
```

```python
import re

TRANS = ("v_exp_f32", "v_log_f32", "v_rcp_f32", "v_rsq_f32", "v_sqrt_f32", "v_sin_f32", "v_cos_f32",
         "v_exp_f16", "v_rcp_iflag_f32")

def parse_regs(tok):
    tok = tok.strip()
    tok = tok.lstrip("-")
    m = re.fullmatch(r"abs\((.*)\)", tok)
    if m: tok = m.group(1)
    tok = tok.strip("|")
    m = re.fullmatch(r"([vas])(\d+)", tok)
    if m: return [(m.group(1), int(m.group(2)))]
    m = re.fullmatch(r"([vas])\[(\d+):(\d+)\]", tok)
    if m: return [(m.group(1), i) for i in range(int(m.group(2)), int(m.group(3)) + 1)]
    if tok in ("vcc", "vcc_lo", "vcc_hi"): return [("x", "vcc")]
    if tok in ("exec", "exec_lo", "exec_hi"): return [("x", "exec")]
    if tok == "m0": return [("x", "m0")]
    return []

def split_ops(s):
    out, depth, cur = [], 0, ""
    for ch in s:
        if ch in "[(": depth += 1
        if ch in "])": depth -= 1
        if ch == "," and depth == 0:
            out.append(cur.strip()); cur = ""
        else:
            cur += ch
    if cur.strip(): out.append(cur.strip())
    return out

class Ins:
    def __init__(self, text):
        self.text = text
        t = text.split(";")[0].strip()
        self.is_label = t.endswith(":")
        self.is_dir = t.startswith(".") or t == ""
        self.mn = ""
        self.dst, self.src = [], []
        self.cls = "other"
        self.A = self.B = self.C = []
        self.passes = 0
        self.slots = 1
        if self.is_label or self.is_dir:
            self.slots = 0
            return
        parts = t.split(None, 1)
        mn = parts[0]; self.mn = mn
        rest = parts[1] if len(parts) > 1 else ""
        ops = split_ops(rest)
        toks = []
        mods = ""
        for i, o in enumerate(ops):
            sp = o.split(None, 1)
            toks.append(sp[0])
            if len(sp) > 1: mods += " " + sp[1]
        self.mods = mods
        R = [parse_regs(x) for x in toks]
        base = re.sub(r"_(e32|e64|dpp|sdwa)$", "", mn)
        self.base = base
        if mn == "s_nop":
            self.cls = "nop"; self.slots = int(toks[0], 0) + 1
        elif mn.startswith("v_mfma") or mn.startswith("v_smfmac"):
            self.cls = "xdl"
            self.dst = R[0]; self.A = R[1]; self.B = R[2]
            if mn.startswith("v_smfmac"):
                self.C = R[0]; self.B = R[2] + R[3]
            else:
                self.C = R[3] if len(R) > 3 else []
            self.src = self.A + self.B + self.C
            self.passes = 8 if "32x32" in mn else 4
        elif mn.startswith("v_"):
            self.cls = "valu"
            ndst = 1
            if base in ("v_add_co_u32", "v_sub_co_u32", "v_addc_co_u32", "v_subb_co_u32", "v_subrev_co_u32", "v_div_scale_f32", "v_mad_u64_u32"):
                ndst = 2
            if base.startswith("v_permlane") and base.endswith("swap_b32"):
                self.dst = R[0] + R[1]; self.src = R[0] + R[1]
            elif base == "v_nop":
                pass
            else:
                for r in R[:ndst]: self.dst += r
                for r in R[ndst:]: self.src += r
                if base in ("v_fmac_f32", "v_pk_fmac_f16", "v_dot2c_f32_bf16", "v_writelane_b32") or "UNUSED_PRESERVE" in mods or "dpp" in mn:
                    self.src += R[0]
                if base.startswith("v_cmpx"): self.dst += [("x", "exec")]
        elif mn.startswith("ds_"):
            self.cls = "ds"
            if mn.startswith("ds_read") or mn.startswith("ds_bpermute") or mn.startswith("ds_permute") or mn.startswith("ds_swizzle") or "_rtn" in mn:
                self.dst = R[0]
                for r in R[1:]: self.src += r
            else:
                for r in R: self.src += r
        elif mn.startswith("buffer_") or mn.startswith("global_") or mn.startswith("flat_"):
            self.cls = "vmem"
            islds = " lds" in (" " + mods + " ") or "_lds_" in mn
            self.islds = islds
            if "load" in mn and not islds:
                self.dst = R[0]
                for r in R[1:]: self.src += r
                if "d16" in mn: self.src += R[0]
            elif "atomic" in mn and " sc0" in (" " + mods + " ") and mn.startswith("global"):
                self.dst = R[0]
                for r in R[1:]: self.src += r
            else:
                for r in R: self.src += r
            if islds: self.src += [("x", "m0")]
            self.wide_data = []
            if "store" in mn and ("x3" in mn or "x4" in mn):
                self.wide_data = R[0] if mn.startswith("buffer") else R[1]
        elif mn.startswith("s_"):
            self.cls = "salu"
            if mn.startswith("s_cmp") or mn.startswith("s_cbranch") or mn in ("s_branch", "s_barrier", "s_waitcnt", "s_endpgm", "s_sleep", "s_setprio", "s_bitcmp1_b32", "s_bitcmp0_b32"):
                for r in R: self.src += r
            else:
                if R: self.dst = R[0]
                for r in R[1:]: self.src += r
                if "saveexec" in mn: self.dst = self.dst + [("x", "exec")]

def need(p, c):
    n = 0
    pd = set(p.dst)
    vd = set(r for r in pd if r[0] in "va")
    sd = set(r for r in pd if r[0] == "s" or r == ("x", "vcc"))
    cs = set(c.src); cd = set(c.dst)
    if p.cls == "valu":
        if c.cls == "xdl" and vd & cs: n = max(n, 2)
        if c.cls == "xdl" and ("x", "exec") in pd: n = max(n, 4)
        if c.cls == "valu":
            if p.base in TRANS and vd & cs: n = max(n, 1)
            if c.base in ("v_readlane_b32", "v_readfirstlane_b32") and vd & cs: n = max(n, 1)
            if c.base.startswith("v_permlane") and vd & cs: n = max(n, 2)
            if "dpp" in c.mn and vd & cs: n = max(n, 2)
            if sd & cs:
                n = max(n, 4 if c.base in ("v_readlane_b32", "v_writelane_b32", "v_div_fmas_f32") else 2)
            if ("sdwa" in p.mn or ("op_sel" in p.mods and not p.base.startswith("v_pk_"))) and vd & (cs | cd): n = max(n, 1)
            if ("x", "exec") in pd:
                n = max(n, 5)
        if c.cls in ("vmem", "ds"):
            if sd & cs: n = max(n, 5)
            if p.base in TRANS and vd & cs: n = max(n, 1)
        if c.cls == "salu" and sd & cs: n = max(n, 1)
    if p.cls == "xdl":
        big = {4: 8, 8: 12}[p.passes]
        if c.cls in ("valu", "vmem", "ds") and vd & (cs | cd): n = max(n, big)
        if c.cls == "xdl":
            if vd & set(c.A + c.B): n = max(n, big)
            if vd & set(c.C):
                if list(p.dst) == list(c.C) and p.passes == c.passes: pass
                else: n = max(n, {4: 6, 8: 10}[p.passes])
            elif vd & cd and p.passes != c.passes: n = max(n, big)
        if c.cls == "valu" and set(p.C) & cd: n = max(n, {4: 3, 8: 7}[p.passes])
    if p.cls == "salu":
        if ("x", "m0") in pd and c.cls == "vmem" and getattr(c, "islds", False): n = max(n, 1)
        if ("x", "m0") in pd and c.cls == "ds" and "addtid" in c.mn: n = max(n, 1)
    if p.cls == "vmem" and getattr(p, "wide_data", None):
        if set(p.wide_data) & cd: n = max(n, 2 if c.cls == "valu" else 1)
    return n

WINDOW = 14

def pad(lines, report=None):
    out = []
    for text in lines:
        c = Ins(text)
        if c.slots == 0 or c.cls == "nop":
            out.append(c); continue
        dist = 0; req = 0
        for p in reversed(out):
            if p.slots == 0: continue
            r = need(p, c) - dist
            if r > req: req = r
            dist += p.slots
            if dist > WINDOW: break
        if req > 0:
            out.append(Ins("    s_nop %d" % (req - 1)))
            if report is not None: report.append((req, text.strip()))
        out.append(c)
    return [i.text for i in out]

def check_backedges(lines):
    ins = [Ins(t) for t in lines]
    labels = {i.text.split(";")[0].strip()[:-1]: k for k, i in enumerate(ins) if i.is_label}
    problems = []
    for k, i in enumerate(ins):
        if i.mn.startswith("s_cbranch") or i.mn == "s_branch":
            tgt = i.text.split(";")[0].split()[1]
            if tgt not in labels: continue
            tail = [x for x in ins[max(0, k - 40):k + 1] if x.slots]
            head = [x for x in ins[labels[tgt]:labels[tgt] + 60] if x.slots]
            d0 = 0
            for c in head:
                if d0 > WINDOW: break
                dist = d0
                for p in reversed(tail):
                    if need(p, c) > dist:
                        problems.append((p.text.strip(), c.text.strip(), need(p, c), dist))
                    dist += p.slots
                    if dist > WINDOW: break
                d0 += c.slots
                if c.mn == "s_branch" or c.mn == "s_endpgm": break
    return problems

class K:
    def __init__(self, name):
        self.name = name; self.L = []; self.nlab = 0
    def __call__(self, text):
        for t in text.strip("\n").split("\n"):
            t = t.strip()
            if not t: continue
            if t.endswith(":") and " " not in t: self.L.append(t)
            else: self.L.append("    " + t)
    def label(self, base):
        self.nlab += 1
        return "L_%s_%s_%d" % (self.name, base, self.nlab)
    def finish(self, nvgpr, nsgpr=96, accum=None):
        rep = []
        body = pad(self.L, rep)
        pr = check_backedges(body)
        if pr:
            for p in pr: print("BRANCH HAZARD", p)
            raise SystemExit("branch hazards in " + self.name)
        mv = ma = ms = -1
        for t in body:
            i = Ins(t)
            for r in i.dst + i.src:
                if r[0] == "v": mv = max(mv, r[1])
                if r[0] == "a": ma = max(ma, r[1])
                if r[0] == "s": ms = max(ms, r[1])
        accum = accum or (mv + 4) // 4 * 4
        assert mv < accum, (mv, accum)
        nfv = accum + ma + 1 if ma >= 0 else mv + 1
        assert nfv <= nvgpr, (self.name, nfv, nvgpr)
        assert ms < nsgpr, (ms, nsgpr)
        txt = ".text\n.globl %s\n.p2align 8\n.type %s,@function\n%s:\n" % (self.name, self.name, self.name)
        txt += "\n".join(body) + "\n"
        kd = """.section .rodata,"a"
.p2align 6
.amdhsa_kernel %s
  .amdhsa_next_free_vgpr %d
  .amdhsa_next_free_sgpr %d
  .amdhsa_accum_offset %d
  .amdhsa_group_segment_fixed_size 0
  .amdhsa_kernarg_size 136
  .amdhsa_user_sgpr_count 2
  .amdhsa_user_sgpr_kernarg_segment_ptr 1
  .amdhsa_system_sgpr_workgroup_id_x 1
.end_amdhsa_kernel
""" % (self.name, max(nfv, accum if ma < 0 and accum <= nfv + 3 and False else nfv), ms + 1, accum)
        self.info = dict(vgpr=nfv, sgpr=ms + 1, ninstr=sum(1 for t in body if Ins(t).slots), pads=len(rep))
        return txt, kd
```

```python
import sys
sys.path.insert(0, "gen")
from asmlib import *

HDR = open("concat_heads__ssm_conv_s4__grouped_kv_mqa__prompt.s.ref").read().split("; Override launch")[0]

U, ARE, AIM, BRE, BIM, CRE, CIM, LDT, DSK, X, WQ, WK, WV, WO, OUT, DBG, WS = [16 + 2 * i for i in range(17)]
def sp(b): return "s[%d:%d]" % (b, b + 1)
def vr(b, n): return "v[%d:%d]" % (b, b + n - 1) if n > 1 else "v%d" % b
TILE = 2080
KVBYTES = 64 * TILE
OFRAG = 0x40000
LOG2E = 0x3fb8aa3b
CSCALE = 0x3eb8aa3b

def prologue(k, end):
    k(f"""
    s_cmp_ge_u32 s2, 256
    s_cbranch_scc1 {end}
    s_load_dwordx16 s[16:31], s[0:1], 0
    s_load_dwordx16 s[32:47], s[0:1], 64
    s_load_dwordx2 s[48:49], s[0:1], 128
    v_lshrrev_b32 v2, 6, v0
    v_and_b32 v1, 63, v0
    v_readfirstlane_b32 s3, v2
    s_and_b32 s4, s2, 7
    s_lshr_b32 s5, s2, 3                ; slot
    s_lshr_b32 s6, s5, 3
    s_lshl2_add_u32 s6, s4, s6
    s_and_b32 s7, s5, 7
    s_lshl_b32 s8, s4, 5
    s_add_u32 s8, s8, s5
    """)

def cmul(k, r, x, y, t):
    k(f"v_pk_mul_f32 {vr(t,2)}, {vr(x,2)}, {vr(y,2)} op_sel:[0,0] op_sel_hi:[1,0]")
    k(f"v_pk_fma_f32 {vr(r,2)}, {vr(x,2)}, {vr(y,2)}, {vr(t,2)} op_sel:[1,1,0] op_sel_hi:[0,1,1] neg_lo:[1,0,0]")

def direct(k, r, al, be, lam, t):
    if lam == "1.0":
        k(f"v_exp_f32 v{t}, v{al}")
        k(f"v_fract_f32 v{t+1}, v{be}")
    else:
        k(f"v_mul_f32 v{t}, {lam}, v{al}")
        k(f"v_mul_f32 v{t+1}, {lam}, v{be}")
        k(f"v_exp_f32 v{t}, v{t}")
        k(f"v_fract_f32 v{t+1}, v{t+1}")
    k(f"v_cos_f32 v{r}, v{t+1}")
    k(f"v_sin_f32 v{r+1}, v{t+1}")
    k(f"v_mul_f32 v{r}, v{r}, v{t}")
    k(f"v_mul_f32 v{r+1}, v{r+1}, v{t}")

def gen_k1():
    k = K("k1_kernel")
    END = "L_k1_end"
    prologue(k, END)
    P1W, P1R = 0, 32768
    TAB = 49152; ROW = 528; TCH = 64 * ROW
    KIM = TAB + 2 * TCH; KCP = 4160
    UIM = KIM + 4 * KCP; UCH = 4576
    PART = TAB
    LDS = UIM + 2 * UCH
    k("""
    v_and_b32 v3, 15, v1                ; l%16
    v_lshrrev_b32 v4, 4, v1             ; g = l/16
    s_waitcnt lgkmcnt(0)
    """)
    SK1 = k.label("skip1")
    k(f"""
    s_cmp_ge_u32 s7, 4
    s_cbranch_scc1 {SK1}
    s_lshl_b32 s9, s6, 2
    s_add_u32 s9, s9, s7
    s_lshl_b32 s10, s9, 14              ; G*16*1024
    s_lshl_b32 s11, s3, 7
    s_add_u32 s10, s10, s11             ; + 128*w
    v_lshlrev_b32 v5, 10, v3
    v_lshl_add_u32 v5, v4, 4, v5
    v_add_u32 v5, s10, v5
    global_load_dwordx4 v[8:11], v5, {sp(X)}
    global_load_dwordx4 v[12:15], v5, {sp(X)} offset:64
    s_lshl_b32 s10, s3, 11              ; 2048*w
    v_lshlrev_b32 v6, 4, v1
    v_add_u32 v6, s10, v6
    s_lshl_b32 s11, s3, 12
    s_mov_b32 m0, s11
    global_load_lds_dwordx4 v6, {sp(WK)}
    global_load_lds_dwordx4 v6, {sp(WK)} offset:1024
    s_add_u32 m0, s11, 2048
    global_load_lds_dwordx4 v6, {sp(WV)}
    global_load_lds_dwordx4 v6, {sp(WV)} offset:1024
    {SK1}:
    """)
    k(f"""
    s_lshl_b32 s10, s8, 2
    s_load_dword s12, {sp(LDT)}, s10
    s_load_dword s13, {sp(DSK)}, s10
    s_and_b32 s14, s3, 1                ; ch
    s_bfe_u32 s15, s3, 0x10001
    s_lshl_b32 s10, s8, 9               ; chp*512
    s_lshl_b32 s11, s14, 8
    s_add_u32 s10, s10, s11
    s_lshl_b32 s11, s15, 7
    s_add_u32 s10, s10, s11
    v_lshlrev_b32 v7, 1, v1
    v_add_u32 v7, s10, v7
    global_load_ushort v16, v7, {sp(ARE)}
    global_load_ushort v17, v7, {sp(AIM)}
    global_load_ushort v18, v7, {sp(BRE)}
    global_load_ushort v19, v7, {sp(BIM)}
    global_load_ushort v20, v7, {sp(CRE)}
    global_load_ushort v21, v7, {sp(CIM)}
    ; u loads: t = 256w + 16n + 4g + k
    v_lshlrev_b32 v22, 4, v3
    v_lshl_add_u32 v22, v4, 2, v22
    s_lshl_b32 s10, s3, 8
    v_add_u32 v22, s10, v22             ; v22 = t0
    v_lshlrev_b32 v23, 10, v22
    s_lshl_b32 s10, s8, 2
    v_add_u32 v23, s10, v23
    global_load_dword v24, v23, {sp(U)}
    global_load_dword v25, v23, {sp(U)} offset:1024
    global_load_dword v26, v23, {sp(U)} offset:2048
    global_load_dword v27, v23, {sp(U)} offset:3072
    """)
    SK2 = k.label("skip2")
    k(f"""
    s_cmp_ge_u32 s7, 4
    s_cbranch_scc1 {SK2}
    s_lshl_b32 s11, s3, 12
    v_lshlrev_b32 v5, 8, v4
    v_lshl_add_u32 v5, v3, 3, v5
    v_add_u32 v5, s11, v5
    s_waitcnt vmcnt(10)
    ds_read_b64_tr_b16 v[32:33], v5
    ds_read_b64_tr_b16 v[34:35], v5 offset:128
    ds_read_b64_tr_b16 v[36:37], v5 offset:1024
    ds_read_b64_tr_b16 v[38:39], v5 offset:1152
    ds_read_b64_tr_b16 v[40:41], v5 offset:2048
    ds_read_b64_tr_b16 v[42:43], v5 offset:2176
    ds_read_b64_tr_b16 v[44:45], v5 offset:3072
    ds_read_b64_tr_b16 v[46:47], v5 offset:3200
    s_lshl_b32 s11, s3, 11
    v_lshlrev_b32 v6, 4, v1
    v_add_u32 v5, s11, v6
    s_waitcnt lgkmcnt(0)
    v_mfma_f32_16x16x32_bf16 v[48:51], v[32:35], v[8:11], 0
    v_mfma_f32_16x16x32_bf16 v[52:55], v[8:11], v[40:43], 0
    v_mfma_f32_16x16x32_bf16 v[48:51], v[36:39], v[12:15], v[48:51]
    v_mfma_f32_16x16x32_bf16 v[52:55], v[12:15], v[44:47], v[52:55]
    ds_write_b128 v5, v[48:51] offset:{P1R}
    ds_write_b128 v5, v[52:55] offset:{P1R+1024}
    s_waitcnt lgkmcnt(0)
    s_barrier
    s_cmp_ge_u32 s3, 2
    s_cbranch_scc1 {SK2}
    s_lshl_b32 s11, s3, 10
    v_add_u32 v5, s11, v6
    """)
    for p in range(8):
        k(f"ds_read_b128 {vr(32+4*p,4)}, v5 offset:{P1R+p*2048}")
    k("s_waitcnt lgkmcnt(0)")
    for st in (16, 8, 4):
        for i in range(st):
            k(f"v_add_f32 v{32+i}, v{32+i}, v{32+st+i}")
    VW = k.label("vwave"); ST = k.label("p1st")
    k(f"""
    s_lshr_b32 s10, s9, 1
    s_mul_i32 s10, s10, {TILE}          ; T*2080
    s_and_b32 s11, s9, 1                ; sub
    v_and_b32 v36, 1, v4                ; g%2
    v_lshrrev_b32 v37, 1, v4            ; g/2
    s_cmp_eq_u32 s3, 1
    s_cbranch_scc1 {VW}
    v_mul_f32 v32, {CSCALE}, v32
    v_mul_f32 v33, {CSCALE}, v33
    v_mul_f32 v34, {CSCALE}, v34
    v_mul_f32 v35, {CSCALE}, v35
    s_lshl_b32 s11, s11, 8
    s_add_u32 s10, s10, s11
    v_lshlrev_b32 v5, 9, v36
    v_lshl_add_u32 v5, v37, 3, v5
    s_branch {ST}
    {VW}:
    s_mul_i32 s11, s11, 528
    s_add_u32 s10, s10, s11
    s_add_u32 s10, s10, 1024
    v_mov_b32 v38, 0x3f803f80
    v_lshlrev_b32 v39, 2, v1
    v_add_u32 v39, s10, v39
    s_mov_b64 exec, 15
    global_store_dword v39, v38, {sp(WS)} offset:512
    s_mov_b64 exec, -1
    v_lshlrev_b32 v5, 8, v37
    v_lshl_add_u32 v5, v36, 3, v5
    {ST}:
    v_lshl_add_u32 v5, v3, 4, v5
    v_add_u32 v5, s10, v5
    v_cvt_pk_bf16_f32 v32, v32, v33
    v_cvt_pk_bf16_f32 v33, v34, v35
    global_store_dwordx2 v5, v[32:33], {sp(WS)}
    {SK2}:
    """)
    k(f"""
    s_waitcnt lgkmcnt(0)
    s_lshl_b32 s10, s14, 4
    s_lshr_b32 s10, s12, s10
    s_lshl_b32 s10, s10, 16
    v_mov_b32 v28, s10
    v_mul_f32 v28, {LOG2E}, v28
    v_exp_f32 v28, v28
    v_cvt_pk_bf16_f32 v28, v28, v28
    v_and_b32 v28, 0xffff0000, v28
    s_mul_i32 s10, s14, {TCH}
    s_lshl_b32 s11, s15, 8
    s_add_u32 s10, s10, s11
    s_add_u32 s10, s10, {TAB}
    v_lshlrev_b32 v29, 2, v1
    v_add_u32 v29, s10, v29
    s_waitcnt vmcnt(0)
    """)
    for r in range(16, 22): k(f"v_lshlrev_b32 v{r}, 16, v{r}")
    k(f"""
    v_mul_f32 v16, v16, v28
    v_mul_f32 v17, v17, v28
    v_mul_f32 v16, {LOG2E}, v16         ; alpha
    v_mul_f32 v17, 0.15915494, v17      ; beta
    """)
    XW = k.label("xwave"); TD = k.label("tabdone")
    k(f"s_cmp_ge_u32 s3, 4\ns_cbranch_scc1 {XW}")
    direct(k, 32, 16, 17, "0x41000000", 30)
    cmul(k, 34, 32, 32, 30)
    k(f"v_mov_b32 v40, 0x3f80\nds_write_b32 v29, v40 offset:{32*ROW}")
    k(f"v_cvt_pk_bf16_f32 v40, v32, v33\nds_write_b32 v29, v40 offset:{33*ROW}")
    k(f"v_cvt_pk_bf16_f32 v41, v34, v35\nds_write_b32 v29, v41 offset:{34*ROW}")
    k("v_mov_b32 v36, v34\nv_mov_b32 v37, v35")
    for j in range(3, 32):
        r = 32 if j % 2 else 36
        cmul(k, r, r, 34, 30 if j % 2 else 38)
        k(f"v_cvt_pk_bf16_f32 v{40+j%4}, v{r}, v{r+1}\nds_write_b32 v29, v{40+j%4} offset:{(32+j)*ROW}")
    k(f"s_branch {TD}\n{XW}:")
    rows = {}
    def rowidx(r, h): return 8 * (r // 4) + 4 * h + r % 4
    for h in range(2):
        bases = [4*h + i for i in range(5)] + [256 + 4*h + i for i in (0, 2, 4)] + [512 + 256*h + i for i in (0, 4, 8)] + \
                [1024 + 256*h + i for i in (0, 8)] + [1536 + 256*h + i for i in (0, 8)]
        for r, b in enumerate(bases): rows.setdefault(b, []).append(rowidx(r, h))
    cnt = [0]
    def put(reg, base):
        t = 56 + cnt[0] % 4; cnt[0] += 1
        k(f"v_cvt_pk_bf16_f32 v{t}, v{reg}, -v{reg+1}")
        for ri in rows[base]:
            k(f"ds_write_b32 v29, v{t} offset:{ri*ROW}")
    direct(k, 32, 16, 17, "1.0", 30)
    direct(k, 40, 16, 17, "0x43800000", 30)
    cmul(k, 42, 20, 18, 30)
    k("v_mul_f32 v42, v42, v28\nv_mul_f32 v43, v43, v28")
    cmul(k, 34, 32, 32, 30)
    cmul(k, 36, 34, 34, 30)
    cmul(k, 38, 36, 36, 30)
    steps = {0: (32, 1, 8), 1: (34, 2, 4), 2: (36, 4, 2), 3: (36, 4, 2), 4: (38, 8, 1), 5: (38, 8, 1), 6: (38, 8, 1), 7: (38, 8, 1)}
    for a in range(8):
        put(42, 256 * a)
        e, st, n = steps[a]
        for i in range(1, n + 1):
            cmul(k, 44, 42 if i == 1 else 44, e, 46)
            put(44, 256 * a + st * i)
        if a < 7: cmul(k, 42, 42, 40, 30)
    k(f"{TD}:")
    k(f"""
    s_mov_b32 s10, 0x05040100
    s_mov_b32 s11, 0x07060302
    v_perm_b32 v32, v25, v24, s10
    v_perm_b32 v33, v27, v26, s10
    v_perm_b32 v34, v25, v24, s11
    v_perm_b32 v35, v27, v26, s11
    v_lshlrev_b32 v30, 1, v22
    v_add_u32 v30, {UIM + 480}, v30
    ds_write_b64 v30, v[32:33]
    ds_write_b64 v30, v[34:35] offset:{UCH}
    v_mov_b32 v36, 0
    v_mov_b32 v37, 0
    v_lshlrev_b32 v31, 3, v1
    v_add_u32 v31, {UIM}, v31
    s_mov_b64 exec, 0x0fffffffffffffff
    """.replace("s_mov_b64 exec, 0x0fffffffffffffff", "s_mov_b32 exec_hi, 0x0fffffff"))
    k(f"""
    ds_write_b64 v31, v[36:37]
    ds_write_b64 v31, v[36:37] offset:{UCH}
    s_mov_b64 exec, -1
    s_waitcnt lgkmcnt(0)
    s_barrier
    """)
    SK3 = k.label("skip3")
    k(f"""
    s_cmp_ge_u32 s3, 2
    s_cbranch_scc1 {SK3}
    v_and_b32 v5, 31, v1                ; j / row
    v_lshrrev_b32 v6, 5, v1             ; h
    v_mul_u32_u24 v30, {ROW}, v5
    v_lshl_add_u32 v30, v6, 4, v30
    s_mul_i32 s10, s14, {TCH}
    s_add_u32 s10, s10, {TAB}
    v_add_u32 v30, s10, v30
    """)
    for kk in range(16):
        k(f"ds_read_b128 {vr(64+8*kk,4)}, v30 offset:{32*kk}")
        k(f"ds_read_b128 {vr(68+8*kk,4)}, v30 offset:{32*ROW+32*kk}")
        if kk >= 4:
            q = kk - 4
            k(f"s_waitcnt lgkmcnt(8)")
            k(f"v_mfma_f32_32x32x16_bf16 v[32:47], {vr(64+8*q,4)}, {vr(68+8*q,4)}, {'0' if q == 0 else 'v[32:47]'}")
    for q in range(12, 16):
        k(f"s_waitcnt lgkmcnt({2*(15-q)})")
        k(f"v_mfma_f32_32x32x16_bf16 v[32:47], {vr(64+8*q,4)}, {vr(68+8*q,4)}, v[32:47]")
    d = lambda r: f"v{32+r}"
    k(f"""
    s_mul_i32 s10, s14, {2*KCP}
    s_add_u32 s10, s10, {KIM}
    v_lshlrev_b32 v7, 4, v5             ; 16*j
    v_sub_u32 v7, s10, v7               ; E base - 16j
    v_lshlrev_b32 v8, 3, v6
    v_sub_u32 v8, v7, v8                ; - 8h      (b64 blocks 0,1)
    v_lshlrev_b32 v9, 9, v6
    v_sub_u32 v9, v7, v9                ; - 512h    (b128 blocks 2..7)
    v_and_b32 v10, 1, v1
    v_cmp_eq_u32 vcc, 0, v10            ; even j
    """)
    pk = lambda dst, lo, hi: k(f"v_cvt_pk_bf16_f32 v{dst}, {lo}, {hi}")
    pk(64, d(4), d(3)); pk(65, d(2), d(1)); pk(66, d(3), d(2)); pk(67, d(1), d(0))
    k(f"ds_write_b64 v8, v[64:65] offset:{4080+8}")
    k(f"ds_write_b64 v8, v[66:67] offset:{KCP+4080+8}")
    pk(68, d(7), d(7)); pk(69, d(6), d(5)); pk(70, d(7), d(6)); pk(71, d(5), d(5))
    k(f"ds_write_b64 v8, v[68:69] offset:{4080+8-512}")
    k(f"ds_write_b64 v8, v[70:71] offset:{KCP+4080+8-512}")
    pk(72, d(10), d(10)); pk(73, d(10), d(9)); pk(74, d(9), d(9)); pk(75, d(8), d(8))
    pk(76, d(10), d(10)); pk(77, d(9), d(9)); pk(78, d(9), d(8)); pk(79, d(8), d(8))
    k(f"ds_write_b128 v9, v[72:75] offset:{4080-1024}")
    k(f"ds_write_b128 v9, v[76:79] offset:{KCP+4080-1024}")
    for (ra, blk, rb) in ((11, 4, 80), (13, 6, 88)):
        a, b = d(ra), d(ra + 1)
        k(f"v_cndmask_b32 v11, {b}, {a}, vcc")
        pk(rb, b, b); pk(rb+1, b, b); pk(rb+2, "v11", a); pk(rb+3, a, a)
        pk(rb+4, b, b); pk(rb+5, b, "v11"); pk(rb+6, a, a); pk(rb+7, a, a)
        k(f"ds_write_b128 v9, {vr(rb,4)} offset:{4080-512*blk}")
        k(f"ds_write_b128 v9, {vr(rb+4,4)} offset:{KCP+4080-512*blk}")
    k(f"""
    v_cvt_pk_bf16_f32 v12, {d(0)}, 0
    v_cmp_eq_u32 vcc, 0, v1
    v_mov_b32 v13, 0
    v_cndmask_b32 v12, v13, v12, vcc
    v_lshlrev_b32 v14, 2, v1
    v_add_u32 v14, s10, v14
    s_mov_b64 exec, 0xff
    ds_write_b32 v14, v12 offset:4096
    ds_write_b32 v14, v13 offset:{KCP+4096}
    s_mov_b64 exec, -1
    s_waitcnt lgkmcnt(0)
    {SK3}:
    s_barrier
    """)
    SK4 = k.label("skip4")
    k(f"""
    s_cmp_ge_u32 s3, 4
    s_cbranch_scc1 {SK4}
    v_add_u32 v5, 1, v3
    v_and_b32 v5, 30, v5
    v_lshlrev_b32 v5, 1, v5
    v_lshlrev_b32 v6, 4, v4
    v_sub_u32 v5, v6, v5
    v_and_b32 v6, 1, v3
    v_mul_u32_u24 v6, {KCP}, v6
    v_add_u32 v5, v5, v6
    s_mul_i32 s10, s14, {2*KCP}
    s_lshl_b32 s11, s15, 8
    s_sub_u32 s10, s10, s11
    s_add_u32 s10, s10, {KIM + 4064 - 192 - 512}
    v_add_u32 v8, s10, v5
    v_subrev_u32 v9, 1024, v8
    v_subrev_u32 v10, 2048, v8
    v_subrev_u32 v11, 3072, v8
    v_lshlrev_b32 v12, 5, v3
    v_lshl_add_u32 v12, v4, 4, v12
    s_mul_i32 s10, s14, {UCH}
    s_sub_u32 s10, s10, s11
    s_add_u32 s10, s10, {UIM + 448 - 192}
    v_add_u32 v12, s10, v12
    """)
    ACC = 32; FB = [64, 128]
    def loads(mm, buf):
        L = []
        for i in range(8):
            p, ii = i // 2, i % 2
            o = (3 - mm) * 16 + (1 - ii) * 128
            L.append(f"ds_read_b128 {vr(buf+32+4*i,4)}, v12 offset:{512*i + (3-mm)*64}")
            L.append(f"ds_read2_b32 {vr(buf+4*i,2)}, v{8+p} offset0:{o} offset1:{o+1}")
            L.append(f"ds_read2_b32 {vr(buf+4*i+2,2)}, v{8+p} offset0:{o+2} offset1:{o+3}")
        return L
    for t in loads(0, FB[0]): k(t)
    for mm in range(4):
        buf = FB[mm % 2]
        nxt = loads(mm + 1, FB[(mm + 1) % 2]) if mm < 3 else []
        k("s_waitcnt lgkmcnt(0)")
        seen = set()
        for i in range(8):
            for ct in range(i, 8):
                c = "0" if (mm == 0 and ct not in seen) else vr(ACC + 4*ct, 4)
                seen.add(ct)
                k(f"v_mfma_f32_16x16x32_bf16 {vr(ACC+4*ct,4)}, {vr(buf+4*i,4)}, {vr(buf+32+4*(ct-i),4)}, {c}")
                if nxt: k(nxt.pop(0))
        assert not nxt
    k(f"""
    s_lshl_b32 s10, s15, 1
    s_add_u32 s10, s10, s14
    s_lshl_b32 s10, s10, 13
    s_add_u32 s10, s10, {PART}
    v_lshlrev_b32 v5, 4, v1
    v_add_u32 v5, s10, v5
    """)
    for ct in range(8): k(f"ds_write_b128 v5, {vr(ACC+4*ct,4)} offset:{1024*ct}")
    k(f"""
    s_waitcnt lgkmcnt(0)
    {SK4}:
    s_barrier
    v_lshlrev_b32 v5, 4, v0
    v_add_u32 v5, {PART}, v5
    ds_read_b128 v[32:35], v5
    ds_read_b128 v[36:39], v5 offset:8192
    ds_read_b128 v[40:43], v5 offset:16384
    ds_read_b128 v[44:47], v5 offset:24576
    s_lshl_b32 s10, s13, 16
    s_and_b32 s11, s13, 0xffff0000
    v_lshlrev_b32 v23, 11, v22
    s_lshl_b32 s9, s8, 2
    v_add_u32 v23, s9, v23
    v_add_u32 v28, 4096, v23
    """)
    for i in range(4):
        k(f"""
        v_lshlrev_b32 v48, 16, v{24+i}
        v_and_b32 v49, 0xffff0000, v{24+i}
        v_mul_f32 v48, s10, v48
        v_mul_f32 v49, s11, v49
        v_cvt_pk_bf16_f32 v{52+i}, v48, v49
        """)
    k("s_waitcnt lgkmcnt(0)")
    for i in range(4):
        k(f"""
        v_add_f32 v48, v{32+i}, v{40+i}
        v_add_f32 v49, v{36+i}, v{44+i}
        v_cvt_pk_bf16_f32 v50, v48, v49
        v_lshlrev_b32 v48, 16, v50
        v_and_b32 v49, 0xffff0000, v50
        v_lshlrev_b32 v50, 16, v{52+i}
        v_and_b32 v51, 0xffff0000, v{52+i}
        v_add_f32 v48, v48, v50
        v_add_f32 v49, v49, v51
        v_cvt_pk_bf16_f32 v{56+i}, v48, v49
        global_store_dword v{23 if i < 2 else 28}, v{56+i}, {sp(OUT)} offset:{2048*(i%2)}
        """)
    k(f"{END}:\ns_endpgm")
    return k, LDS

def srd(k, s, ptr, nbytes):
    k(f"s_mov_b32 s{s}, s{ptr}\ns_and_b32 s{s+1}, s{ptr+1}, 0xffff\ns_mov_b32 s{s+2}, {nbytes}\ns_mov_b32 s{s+3}, 0x20000")

def gen_k2():
    k = K("k2_kernel")
    END = "L_k2_end"
    prologue(k, END)
    CB = 32768
    LDS = 163840
    SX, SW, SK = 52, 56, 60
    k("""
    v_and_b32 v3, 15, v1
    v_lshrrev_b32 v4, 4, v1
    ; X DMA voffsets: rows 8w + 4e + l/16 ; phys chunk p=l%16 <- logical p ^ (row%16)
    s_lshl_b32 s9, s3, 3
    v_add_u32 v5, s9, v4                ; row (e=0)
    v_add_u32 v6, 4, v5                 ; row (e=1)
    v_xor_b32 v7, v5, v3
    v_and_b32 v7, 15, v7
    v_lshlrev_b32 v7, 4, v7
    v_lshl_add_u32 v7, v5, 10, v7       ; voff X e=0
    v_xor_b32 v8, v6, v3
    v_and_b32 v8, 15, v8
    v_lshlrev_b32 v8, 4, v8
    v_lshl_add_u32 v8, v6, 10, v8       ; voff X e=1
    ; W DMA voffset: row l/8, phys chunk p=l%8 <- logical p ^ (4*((l/16)&1))
    v_lshrrev_b32 v9, 3, v1
    v_and_b32 v10, 1, v4
    v_lshlrev_b32 v10, 2, v10
    v_and_b32 v11, 7, v1
    v_xor_b32 v10, v10, v11
    v_lshlrev_b32 v10, 4, v10
    v_lshl_add_u32 v9, v9, 10, v10      ; voff W
    v_lshlrev_b32 v12, 4, v1            ; lane*16
    s_waitcnt lgkmcnt(0)
    """)
    srd(k, SX, X, 2097152); srd(k, SW, WQ, 524288); srd(k, SK, WS, 0x30000)
    k(f"""
    s_lshl_b32 s10, s6, 16
    s_lshl_b32 s11, s7, 7
    s_lshl_b32 s12, s3, 14
    s_add_u32 s11, s11, s12             ; + 16w rows
    s_lshl_b32 s12, s3, 11
    """)
    for c in range(4):
        k(f"""
        s_add_u32 m0, s12, {CB + c*32768}
        s_add_u32 s13, s10, {c*256}
        buffer_load_dwordx4 v7, s[{SX}:{SX+3}], s13 offen lds
        s_add_u32 m0, s12, {CB + c*32768 + 1024}
        s_add_u32 s14, s11, {c*131072}
        buffer_load_dwordx4 v8, s[{SX}:{SX+3}], s13 offen lds
        s_add_u32 m0, s12, {CB + c*32768 + 16384}
        s_add_u32 s15, s14, 8192
        buffer_load_dwordx4 v9, s[{SW}:{SW+3}], s14 offen lds
        s_add_u32 m0, s12, {CB + c*32768 + 16384 + 1024}
        s_nop 0
        buffer_load_dwordx4 v9, s[{SW}:{SW+3}], s15 offen lds
        """)
    k(f"""
    s_lshl_b32 s13, s3, 12
    s_mov_b32 m0, s13
    s_nop 0
    """)
    for i in range(4): k(f"buffer_load_dwordx4 v12, s[{SK}:{SK+3}], s13 offen offset:{1024*i} lds")
    k(f"""
    s_and_b32 s9, s3, 1                 ; qh
    s_bfe_u32 s10, s3, 0x10001          ; nt
    s_lshr_b32 s11, s3, 2               ; kh
    v_and_b32 v13, 31, v1
    v_lshrrev_b32 v14, 5, v1            ; h
    s_lshl_b32 s12, s9, 5
    v_add_u32 v13, s12, v13             ; row
    s_lshl_b32 s12, s11, 3
    v_add_u32 v15, s12, v14
    v_xor_b32 v15, v15, v3              ; ^ row%16   (row%16 == l%16)
    v_lshlrev_b32 v13, 8, v13
    v_add_u32 v13, {CB}, v13
    """)
    for j in range(4):
        k(f"v_xor_b32 v{16+j}, {2*j}, v15\nv_lshl_add_u32 v{16+j}, v{16+j}, 4, v13")
    k(f"""
    ; A addr = CB+16384 + (64kh + 8h + i/4)*128 + ((nt ^ (i/8))*64) + (g4%2)*32 + (i%4)*8
    v_lshrrev_b32 v20, 2, v3
    v_lshl_add_u32 v20, v14, 3, v20
    v_lshlrev_b32 v20, 7, v20
    v_lshrrev_b32 v21, 3, v3
    v_xor_b32 v21, s10, v21
    v_lshl_add_u32 v20, v21, 6, v20
    v_and_b32 v21, 1, v4
    v_lshl_add_u32 v20, v21, 5, v20
    v_and_b32 v21, 3, v1
    v_lshl_add_u32 v20, v21, 3, v20
    s_lshl_b32 s12, s11, 13
    s_add_u32 s12, s12, {CB + 16384}
    v_add_u32 v20, s12, v20
    """)
    ACC = 32
    for c in range(4):
        k(f"s_waitcnt vmcnt({16 - 4*c})\ns_barrier")
        if c == 2:
            for r in range(16, 21): k(f"v_add_u32 v{r}, 0x10000, v{r}")
        co = (c % 2) * 32768
        for j in range(4):
            k(f"ds_read_b128 {vr(64+8*j,4)}, v{16+j} offset:{co}")
            k(f"ds_read_b64_tr_b16 {vr(68+8*j,2)}, v20 offset:{co + j*2048}")
            k(f"ds_read_b64_tr_b16 {vr(70+8*j,2)}, v20 offset:{co + j*2048 + 512}")
        for j in range(4):
            k(f"s_waitcnt lgkmcnt({9 - 3*j})")
            k(f"v_mfma_f32_32x32x16_bf16 {vr(ACC,16)}, {vr(68+8*j,4)}, {vr(64+8*j,4)}, {'0' if c == 0 and j == 0 else vr(ACC,16)}")
    K1L = k.label("kh1"); XD = k.label("xdone"); K1b = k.label("kh1b"); XD2 = k.label("xdone2")
    QF = 24
    k(f"""
    s_lshl_b32 s12, s3, 11
    s_add_u32 s12, s12, {CB}
    v_add_u32 v21, s12, v12
    v_xor_b32 v22, 8192, v21
    s_cmp_eq_u32 s11, 1
    s_cbranch_scc1 {K1L}
    s_nop 7
    ds_write_b128 v21, {vr(ACC+8,4)}
    ds_write_b128 v21, {vr(ACC+12,4)} offset:1024
    s_branch {XD}
    {K1L}:
    s_nop 7
    ds_write_b128 v21, {vr(ACC,4)}
    ds_write_b128 v21, {vr(ACC+4,4)} offset:1024
    """)
    for i in range(8): k(f"v_mov_b32 v{ACC+i}, v{ACC+8+i}")
    k(f"""
    {XD}:
    s_waitcnt lgkmcnt(0)
    s_barrier
    ds_read_b128 v[64:67], v22
    ds_read_b128 v[68:71], v22 offset:1024
    s_waitcnt vmcnt(0) lgkmcnt(0)
    s_barrier
    """)
    for j in range(3):
        k(f"s_add_u32 s13, s13, 32768\ns_mov_b32 m0, s13\ns_nop 0")
        for i in range(4): k(f"buffer_load_dwordx4 v12, s[{SK}:{SK+3}], s13 offen offset:{1024*i} lds")
    NB = k.label("nob")
    k(f"""
    s_cmp_lg_u32 s3, 0
    s_cbranch_scc1 {NB}
    s_mov_b32 s13, 131072
    s_mov_b32 m0, s13
    s_nop 0
    buffer_load_dwordx4 v12, s[{SK}:{SK+3}], s13 offen lds
    buffer_load_dwordx4 v12, s[{SK}:{SK+3}], s13 offen offset:1024 lds
    {NB}:
    """)
    for i in range(8): k(f"v_add_f32 v{ACC+i}, v{ACC+i}, v{64+i}")
    for i in range(4): k(f"v_cvt_pk_bf16_f32 v{QF+i}, v{ACC+2*i}, v{ACC+2*i+1}")
    OA, CC, SA, SB, KA, KB, VA, VB = 32, 48, 64, 80, 96, 100, 104, 112
    k(f"""
    v_mov_b32 v28, 0xdddddddd
    ; V lane offset: l%32<16 : h*256 + dh*16 ; lanes 20..27 -> h*256 ; lanes 16..19,28..31 -> 512
    v_lshlrev_b32 v31, 8, v14
    v_lshl_add_u32 v21, v3, 4, v31
    v_mov_b32 v22, 512
    s_mov_b32 vcc_lo, 0x0000ffff
    s_mov_b32 vcc_hi, 0x0000ffff
    v_cndmask_b32 v31, v31, v21, vcc
    s_mov_b32 vcc_lo, 0xf00f0000
    s_mov_b32 vcc_hi, 0xf00f0000
    v_cndmask_b32 v31, v31, v22, vcc
    v_add_u32 v31, 1024, v31
    s_mov_b32 s14, 1
    s_mov_b32 s15, 26
    """)
    PASS = k.label("pass"); MX = k.label("maxloop"); LOOP = k.label("loop"); BAR = k.label("bar"); CONT = k.label("cont"); DONE = k.label("done")
    k(f"""
    {PASS}:
    v_mov_b32 v29, v12
    v_mov_b32 v21, 0xff800000
    s_mov_b32 s13, s14
    {MX}:
    ds_read_b128 {vr(KA,4)}, v29
    v_add_u32 v29, {TILE}, v29
    s_waitcnt lgkmcnt(0)
    v_mfma_f32_32x32x16_bf16 {vr(SA,16)}, {vr(KA,4)}, {vr(QF,4)}, 0
    s_sub_u32 s13, s13, 1
    s_cmp_lg_u32 s13, 0
    """)
    for i in range(8): k(f"v_max3_f32 v21, v{SA+2*i}, v{SA+2*i+1}, v21")
    k(f"""
    s_cbranch_scc1 {MX}
    v_mov_b32 v22, v21
    v_permlane32_swap_b32 v21, v22
    v_max_f32 v21, v21, v22
    v_mov_b32 v29, v12
    v_mov_b32 v30, v31
    ds_read_b128 {vr(KA,4)}, v29
    ds_read_b128 {vr(KB,4)}, v29 offset:{TILE}
    ds_read_b128 {vr(VA,4)}, v30
    ds_read_b128 {vr(VA+4,4)}, v30 offset:528
    """)
    for i in range(16): k(f"v_sub_f32 v{CC+i}, 0, v21")
    for i in range(16): k(f"v_mov_b32 v{OA+i}, 0")
    k(f"""
    s_mov_b32 s13, 32
    s_waitcnt lgkmcnt(3)
    v_mfma_f32_32x32x16_bf16 {vr(SA,16)}, {vr(KA,4)}, {vr(QF,4)}, {vr(CC,16)}
    s_nop 7
    .p2align 6
    {LOOP}:
    s_cmp_eq_u32 s13, s15
    s_cbranch_scc1 {BAR}
    {CONT}:
    """)
    def half(Scur, Snxt, Knxt, Kfree, Vcur, Vnxt, off):
        k(f"s_waitcnt lgkmcnt(2)")
        k(f"v_mfma_f32_32x32x16_bf16 {vr(Snxt,16)}, {vr(Knxt,4)}, {vr(QF,4)}, {vr(CC,16)}")
        k(f"ds_read_b128 {vr(Kfree,4)}, v29 offset:{off + 2*TILE}")
        for i in range(10): k(f"v_exp_f32 v{Scur+i}, v{Scur+i}")
        k(f"s_waitcnt lgkmcnt(1)")
        k(f"v_smfmac_f32_32x32x32_bf16 {vr(OA,16)}, {vr(Vcur,4)}, {vr(Scur,8)}, v28")
        k(f"ds_read_b128 {vr(Vnxt,4)}, v30 offset:{off + TILE}")
        k(f"ds_read_b128 {vr(Vnxt+4,4)}, v30 offset:{off + TILE + 528}")
        for i in range(10, 16): k(f"v_exp_f32 v{Scur+i}, v{Scur+i}")
    half(SA, SB, KB, KA, VA, VB, 0)
    k(f"s_sub_u32 s13, s13, 1")
    k(f"s_nop 0")
    k(f"v_smfmac_f32_32x32x32_bf16 {vr(OA,16)}, {vr(VA+4,4)}, {vr(SA+8,8)}, v28")
    half(SB, SA, KA, KB, VB, VA, TILE)
    k(f"""
    v_add_u32 v29, {2*TILE}, v29
    v_add_u32 v30, {2*TILE}, v30
    v_smfmac_f32_32x32x32_bf16 {vr(OA,16)}, {vr(VB+4,4)}, {vr(SB+8,8)}, v28
    s_cmp_lg_u32 s13, 0
    s_cbranch_scc1 {LOOP}
    s_branch {DONE}
    {BAR}:
    s_waitcnt vmcnt(0)
    s_barrier
    s_branch {CONT}
    {DONE}:
    s_waitcnt lgkmcnt(0)
    s_nop 7
    s_nop 3
    s_mov_b32 vcc_lo, 0
    s_mov_b32 vcc_hi, -1
    v_cndmask_b32 v21, v{OA+8}, v{OA+12}, vcc
    """)
    OK = k.label("ok")
    k(f"""
    s_cmp_lg_u32 s14, 1
    s_cbranch_scc1 {OK}
    v_mov_b32 v22, 0x53800000           ; 2^40
    v_cmp_nle_f32 vcc, v21, v22
    s_cbranch_vccz {OK}
    s_mov_b32 s14, 64
    s_mov_b32 s15, -1
    s_branch {PASS}
    {OK}:
    v_rcp_f32 v21, v21
    """)
    for i in range(8): k(f"v_mul_f32 v{OA+i}, v{OA+i}, v21")
    for i in range(4): k(f"v_cvt_pk_bf16_f32 v{QF+i}, v{OA+2*i}, v{OA+2*i+1}")
    k(f"""
    s_lshl_b32 s12, s6, 1
    s_add_u32 s12, s12, s9
    s_lshl_b32 s12, s12, 5
    s_lshl2_add_u32 s12, s7, s12
    s_lshl1_add_u32 s12, s10, s12
    s_add_u32 s12, s12, s11
    s_lshl_b32 s12, s12, 10
    s_add_u32 s12, s12, {OFRAG}
    v_add_u32 v21, s12, v12
    global_store_dwordx4 v21, {vr(QF,4)}, {sp(WS)}
    {END}:
    s_endpgm
    """)
    return k, LDS

def gen_k3():
    k = K("k3_kernel")
    END = "L_k3_end"
    prologue(k, END)
    LDS = 65536 + 16384
    SW = 56
    k("""
    v_and_b32 v3, 15, v1
    v_lshrrev_b32 v4, 4, v1
    v_lshrrev_b32 v14, 5, v1
    v_lshrrev_b32 v9, 3, v1
    v_and_b32 v10, 1, v4
    v_lshlrev_b32 v10, 2, v10
    v_and_b32 v11, 7, v1
    v_xor_b32 v10, v10, v11
    v_lshlrev_b32 v10, 4, v10
    v_lshl_add_u32 v9, v9, 10, v10      ; voff W
    v_lshlrev_b32 v12, 4, v1
    s_and_b32 s9, s3, 1                 ; qh
    s_bfe_u32 s10, s3, 0x10001          ; nt
    s_lshr_b32 s11, s3, 2               ; kh
    s_waitcnt lgkmcnt(0)
    """)
    srd(k, SW, WO, 524288)
    k(f"""
    s_lshl_b32 s12, s7, 7
    s_lshl_b32 s13, s3, 16
    s_add_u32 s12, s12, s13
    s_lshl_b32 s13, s3, 13
    """)
    for i in range(8):
        k(f"s_add_u32 m0, s13, {1024*i}\ns_add_u32 s14, s12, {8192*i}\nbuffer_load_dwordx4 v9, s[{SW}:{SW+3}], s14 offen lds")
    k(f"""
    s_lshl_b32 s12, s6, 1
    s_add_u32 s12, s12, s9
    s_lshl_b32 s12, s12, 1
    s_add_u32 s12, s12, s11
    s_lshl_b32 s12, s12, 14
    s_add_u32 s12, s12, {OFRAG}
    v_add_u32 v5, s12, v12
    """)
    for j in range(16):
        if j and j % 4 == 0: k("v_add_u32 v5, 4096, v5")
        k(f"global_load_dwordx4 {vr(64+4*j,4)}, v5, {sp(WS)} offset:{1024*(j%4)}")
    k(f"""
    ; A addr = (256kh + 4h + i/4)*128 + ((nt ^ (i/8))*64) + (g4%2)*32 + (i%4)*8 ; head j: +2048, second half +1024
    v_lshrrev_b32 v20, 2, v3
    v_lshl_add_u32 v20, v14, 2, v20
    v_lshlrev_b32 v20, 7, v20
    v_lshrrev_b32 v21, 3, v3
    v_xor_b32 v21, s10, v21
    v_lshl_add_u32 v20, v21, 6, v20
    v_and_b32 v21, 1, v4
    v_lshl_add_u32 v20, v21, 5, v20
    v_and_b32 v21, 3, v1
    v_lshl_add_u32 v20, v21, 3, v20
    s_lshl_b32 s12, s11, 15
    v_add_u32 v20, s12, v20
    s_waitcnt vmcnt(16)
    s_barrier
    """)
    ACC = 32
    for j in range(16):
        k(f"ds_read_b64_tr_b16 {vr(128+4*j,2)}, v20 offset:{j*2048}")
        k(f"ds_read_b64_tr_b16 {vr(130+4*j,2)}, v20 offset:{j*2048+1024}")
        if j % 4 == 3: k("s_waitcnt lgkmcnt(0)")
    for j in range(16):
        k(f"s_waitcnt vmcnt({15-j})")
        k(f"v_mfma_f32_32x32x16_bf16 {vr(ACC,16)}, {vr(128+4*j,4)}, {vr(64+4*j,4)}, {'0' if j == 0 else vr(ACC,16)}")
    K1L = k.label("kh1"); XD = k.label("xdone")
    k(f"""
    s_lshl_b32 s12, s3, 11
    s_add_u32 s12, s12, 65536
    v_add_u32 v21, s12, v12
    v_xor_b32 v22, 8192, v21
    s_cmp_eq_u32 s11, 1
    s_cbranch_scc1 {K1L}
    s_nop 7
    ds_write_b128 v21, {vr(ACC+8,4)}
    ds_write_b128 v21, {vr(ACC+12,4)} offset:1024
    s_branch {XD}
    {K1L}:
    s_nop 7
    ds_write_b128 v21, {vr(ACC,4)}
    ds_write_b128 v21, {vr(ACC+4,4)} offset:1024
    """)
    for i in range(8): k(f"v_mov_b32 v{ACC+i}, v{ACC+8+i}")
    k(f"""
    {XD}:
    s_waitcnt lgkmcnt(0)
    s_barrier
    ds_read_b128 v[64:67], v22
    ds_read_b128 v[68:71], v22 offset:1024
    ; out byte = q*2048 + 1024 + (64hg + 32nt + 16kh + 8h)*2 ; q = 64qb + 32qh + l%32
    v_and_b32 v5, 31, v1
    v_lshlrev_b32 v5, 11, v5
    v_lshl_add_u32 v5, v14, 4, v5
    s_lshl_b32 s12, s6, 1
    s_add_u32 s12, s12, s9
    s_lshl_b32 s12, s12, 16
    s_lshl_b32 s13, s7, 7
    s_add_u32 s12, s12, s13
    s_lshl_b32 s13, s10, 6
    s_add_u32 s12, s12, s13
    s_lshl_b32 s13, s11, 5
    s_add_u32 s12, s12, s13
    v_add_u32 v5, s12, v5
    s_waitcnt lgkmcnt(0)
    """)
    for i in range(8): k(f"v_add_f32 v{ACC+i}, v{ACC+i}, v{64+i}")
    for i in range(4): k(f"v_cvt_pk_bf16_f32 v{24+i}, v{ACC+2*i}, v{ACC+2*i+1}")
    k(f"""
    v_permlane32_swap_b32 v24, v26
    v_permlane32_swap_b32 v25, v27
    global_store_dwordx4 v5, v[24:27], {sp(OUT)} offset:1024
    {END}:
    s_endpgm
    """)
    return k, LDS

def main(path):
    ks = [gen_k1(), gen_k2(), gen_k3()]
    out = HDR
    for k, lds in ks:
        out += f"; @launch kernel={k.name} grid=(256,1,1) block=(512,1,1) lds={lds}\n"
    out += '.amdgcn_target "amdgcn-amd-amdhsa--gfx950"\n'
    kds = ""
    for k, lds in ks:
        t, kd = k.finish(256)
        out += t; kds += kd
        print(k.name, k.info, "lds", lds)
    out += kds
    open(path, "w").write(out)

if __name__ == "__main__":
    main(sys.argv[1] if len(sys.argv) > 1 else "concat_heads__ssm_conv_s4__grouped_kv_mqa__prompt.s")
```

```python
import sys
sys.path.insert(0, "gen")
from asmlib import *

NAME = "concat_heads__ssm_conv_s4__grouped_kv_mqa__prompt"
HDR = open("cdna_kernels/%s.s.ref" % NAME).read().split("; Override launch")[0]
U, ARE, AIM, BRE, BIM, CRE, CIM, LDT, DSK, X, WQ, WK, WV, WO, OUT, DBG, WS = [16 + 2 * i for i in range(17)]
EP = 50
def sp(b): return "s[%d:%d]" % (b, b + 1)
def vr(b, n): return "v[%d:%d]" % (b, b + n - 1) if n > 1 else "v%d" % b
LOG2E = 0x3fb8aa3b
CSCALE = 0x3eb8aa3b
KIMG, VIMG, ZOFF, FLKV, FLO, OFRAG = 0, 0x10000, 0x20000, 0x21000, 0x22000, 0x40000
FLU, FLY, UT, YT = 0x26000, 0x28000, 0x300000, 0x500000
WST, QF, CNT = 131072, 147456, 155648
C_X, C_W, C_K, C_Q, C_H, C_A, C_P = CNT, CNT + 4, CNT + 8, CNT + 16, CNT + 20, CNT + 24, CNT + 64
PART, PSL = 0, 2176
TAB = 69632; ROW = 528; TCH = 64 * ROW
KCP = 4160; YPO = 8448
UIM = TAB + 2 * TCH; UCH = 4576
WOI = 69632
LDS = CNT + 256
SPIN = 63

STAMP = False
def stamp(k, i, real=False):
    if not STAMP: return
    k(f"{'s_memrealtime' if real else 's_memtime'} s[{66+2*i}:{67+2*i}]")
NST = 16
def stamp_flush(k):
    if not STAMP: return
    stamp(k, 14); stamp(k, 15, True)
    k("s_waitcnt vmcnt(0) lgkmcnt(0)")
    k(f"s_lshl_b32 s64, s2, 3\ns_add_u32 s64, s64, s3\ns_lshl_b32 s64, s64, 6\ns_add_u32 s64, s64, 0x800000")
    k("v_mov_b32 v2, s64\ns_mov_b64 exec, 1")
    for i in range(NST):
        k(f"v_mov_b32 v3, s{66+2*i}\nglobal_store_dword v2, v3, {sp(WS)} offset:{4*i}")
    k("s_waitcnt vmcnt(0)")

def cmul(k, r, x, y, t):
    k(f"v_pk_mul_f32 {vr(t,2)}, {vr(x,2)}, {vr(y,2)} op_sel:[0,0] op_sel_hi:[1,0]")
    k(f"v_pk_fma_f32 {vr(r,2)}, {vr(x,2)}, {vr(y,2)}, {vr(t,2)} op_sel:[1,1,0] op_sel_hi:[0,1,1] neg_lo:[1,0,0]")

def direct(k, r, al, be, lam, t):
    if lam == "1.0":
        k(f"v_exp_f32 v{t}, v{al}")
        k(f"v_fract_f32 v{t+1}, v{be}")
    else:
        k(f"v_mul_f32 v{t}, {lam}, v{al}")
        k(f"v_mul_f32 v{t+1}, {lam}, v{be}")
        k(f"v_exp_f32 v{t}, v{t}")
        k(f"v_fract_f32 v{t+1}, v{t+1}")
    k(f"v_cos_f32 v{r}, v{t+1}")
    k(f"v_sin_f32 v{r+1}, v{t+1}")
    k(f"v_mul_f32 v{r}, v{r}, v{t}")
    k(f"v_mul_f32 v{r+1}, v{r+1}, v{t}")

def srd(k, s, ptr, nbytes):
    k(f"s_mov_b32 s{s}, s{ptr}\ns_and_b32 s{s+1}, s{ptr+1}, 0xffff\ns_mov_b32 s{s+2}, {nbytes}\ns_mov_b32 s{s+3}, 0x20000")

END = "L_end"
def lds_signal(k, off):
    k(f"""
    s_waitcnt lgkmcnt(0)
    s_mov_b64 exec, 1
    ds_add_u32 v10, v9 offset:{off - CNT}
    s_mov_b64 exec, -1
    """)
def lds_wait(k, off, target, tv, sleep=1):
    L = k.label("lw"); D = k.label("lwd")
    k(f"""
    {L}:
    ds_read_b32 v{tv}, v10 offset:{off - CNT}
    s_waitcnt lgkmcnt(0)
    v_readfirstlane_b32 s62, v{tv}
    s_cmp_ge_u32 s62, {target}
    s_cbranch_scc1 {D}
    s_sub_u32 s{SPIN}, s{SPIN}, 1
    s_cbranch_scc1 {END}
    s_sleep {sleep}
    s_branch {L}
    {D}:
    """)
def gpoll(k, av, tv, sleep=2):
    L = k.label("gp"); D = k.label("gpd")
    k(f"""
    {L}:
    global_load_dwordx2 {vr(tv,2)}, v{av}, {sp(WS)} sc1
    s_waitcnt vmcnt(0)
    v_cmp_ne_u64 vcc, {sp(EP)}, {vr(tv,2)}
    s_cbranch_vccz {D}
    s_sub_u32 s{SPIN}, s{SPIN}, 1
    s_cbranch_scc1 {END}
    s_sleep {sleep}
    s_branch {L}
    {D}:
    """)
def hsync(k, tv):
    k.hs = getattr(k, "hs", 0) + 1
    lds_signal(k, C_H)
    lds_wait(k, C_H, 4 * k.hs, tv)

def gen():
    k = K(NAME + "_kernel")
    k(f"""
    s_cmp_ge_u32 s2, 256
    s_cbranch_scc1 L_exit
    s_load_dwordx16 s[32:47], s[0:1], 64
    s_load_dwordx2 s[48:49], s[0:1], 128
    s_load_dwordx16 s[16:31], s[0:1], 0
    """)
    stamp(k, 0, True); stamp(k, 1)
    if STAMP:
        for i in range(2, 14): k(f"s_mov_b32 s{66+2*i}, 0")
    k(f"""
    v_lshrrev_b32 v2, 6, v0
    v_and_b32 v1, 63, v0                ; lane
    v_readfirstlane_b32 s3, v2
    s_and_b32 s4, s2, 7
    s_lshr_b32 s5, s2, 3
    s_lshr_b32 s6, s5, 3
    s_lshl2_add_u32 s6, s4, s6          ; qb
    s_and_b32 s7, s5, 7                 ; hg
    s_lshl_b32 s8, s4, 5
    s_add_u32 s8, s8, s5
    s_mov_b32 s{SPIN}, 0x40000
    v_and_b32 v3, 15, v1                ; l%16
    v_lshrrev_b32 v4, 4, v1             ; l/16
    v_lshrrev_b32 v5, 5, v1             ; h
    v_lshlrev_b32 v6, 4, v1             ; lane*16
    v_mov_b32 v9, 1
    v_mov_b32 v10, {CNT}
    v_mov_b32 v7, 0
    v_lshl_add_u32 v8, v1, 2, v10
    ds_write_b32 v8, v7
    s_cmp_lt_u32 s3, 4
    s_cbranch_scc1 L_attn
    s_setprio 2
    s_cmp_eq_u32 s3, 4
    s_cbranch_scc1 L_kvproj
    s_cmp_eq_u32 s3, 5
    s_cbranch_scc1 L_w5
    """)
    def epoch():
        k(f"""
        s_mul_i32 s{EP}, s{EP}, 0x9e3779b1
        s_add_u32 s{EP}, s{EP}, 0x7f4a7c15
        s_xor_b32 s{EP+1}, s{EP+1}, s{EP}
        s_mul_i32 s{EP+1}, s{EP+1}, 0x85ebca6b
        s_add_u32 s{EP+1}, s{EP+1}, 0x2545f491
        """)
    SL = 52
    def xvoff():
        for j in range(4):
            k(f"""
            v_add_u32 v20, {4*j}, v4
            v_xor_b32 v21, v20, v3
            v_lshlrev_b32 v21, 4, v21
            v_lshl_add_u32 v{16+j}, v20, 10, v21
            """)
            if j: k(f"v_subrev_u32 v{16+j}, {1024*j}, v{16+j}")
    def dma4():
        for j in range(4): k(f"buffer_load_dwordx4 v{16+j}, s[{SL}:{SL+3}], s10 offen offset:{1024*j} lds")
    k(f"""
    s_and_b32 s9, s7, 3
    s_cmp_eq_u32 s3, 7
    s_cbranch_scc1 L_ldw
    """)
    xvoff()
    k(f"""
    s_lshl_b32 s56, s6, 16
    s_mov_b32 s11, 0                    ; m0
    s_mov_b32 s12, 16384
    s_mov_b32 s13, 8
    s_mov_b32 s57, s9
    s_waitcnt lgkmcnt(0)
    """)
    srd(k, SL, X, 2097152)
    k(f"""
    s_branch L_ldgo
    L_ldw:
    v_lshrrev_b32 v20, 3, v1
    v_and_b32 v21, 1, v4
    v_lshlrev_b32 v21, 2, v21
    v_and_b32 v22, 7, v1
    v_xor_b32 v21, v21, v22
    v_lshlrev_b32 v21, 4, v21
    v_lshl_add_u32 v16, v20, 10, v21
    v_add_u32 v17, {8192-1024}, v16
    v_add_u32 v18, {2*(8192-1024)}, v16
    v_add_u32 v19, {3*(8192-1024)}, v16
    s_lshl_b32 s56, s7, 7
    s_mov_b32 s11, 16384
    s_mov_b32 s12, 32768
    s_mov_b32 s13, 17
    s_mov_b32 s57, 4
    s_waitcnt lgkmcnt(0)
    """)
    srd(k, SL, WQ, 524288)
    k(f"""
    L_ldgo:
    s_load_dwordx2 {sp(EP)}, {sp(WS)}, {ZOFF}
    s_mov_b32 s14, 0
    """)
    stamp(k, 2)
    k(f"""
    L_ldchunk:
    s_lshl_b32 s10, s9, s13
    s_add_u32 s10, s10, s56
    s_add_u32 s9, s9, 1
    s_and_b32 s9, s9, 3
    s_mov_b32 s15, 0
    L_ldloop:
    s_mov_b32 m0, s11
    s_add_u32 s11, s11, 4096
    s_cmp_eq_u32 s15, s57
    s_cbranch_scc1 L_ldskip
    """)
    dma4()
    k(f"""
    L_ldskip:
    s_add_u32 s10, s10, s12
    s_add_u32 s14, s14, 1
    s_and_b32 s15, s14, 3
    s_cbranch_scc1 L_ldloop
    s_add_u32 s11, s11, 16384
    s_cmp_eq_u32 s14, 4
    s_cbranch_scc0 L_ldnobar
    s_barrier
    L_ldnobar:
    s_cmp_lt_u32 s14, 16
    s_cbranch_scc1 L_ldchunk
    """)
    stamp(k, 3)
    k("s_cmp_eq_u32 s3, 7\ns_cbranch_scc1 L_ldw2")
    for c in range(4):
        k(f"s_waitcnt vmcnt({36 - 12*c})")
        lds_signal(k, C_X)
    stamp(k, 5)
    k("s_branch L_helper\nL_ldw2:")
    for c in range(4):
        k(f"s_waitcnt vmcnt({48 - 16*c})")
        lds_signal(k, C_W)
        if c == 0: stamp(k, 4)
    stamp(k, 5)
    k(f"""
    s_branch L_helper
    L_w5:
    s_waitcnt lgkmcnt(0)
    s_load_dwordx2 {sp(EP)}, {sp(WS)}, {ZOFF}
    s_barrier
    s_branch L_helper
    L_kvproj:
    s_setprio 3
    """)
    xvoff()
    k(f"""
    s_and_b32 s14, s7, 3
    s_lshl2_add_u32 s9, s6, s14         ; G
    s_lshr_b32 s15, s7, 2               ; kind
    s_lshl_b32 s56, s9, 14
    s_lshl_b32 s11, s14, 12
    s_mov_b32 s57, s14
    s_waitcnt lgkmcnt(0)
    s_cmp_eq_u32 s15, 0
    s_cselect_b32 s12, s{WK}, s{WV}
    s_cselect_b32 s13, s{WK+1}, s{WV+1}
    """)
    srd(k, SL, X, 2097152)
    for g in range(4):
        k(f"""
        s_add_u32 m0, s11, {32768*g}
        s_lshl_b32 s10, s57, 8
        s_add_u32 s10, s10, s56
        """)
        dma4()
        k(f"""
        s_lshl_b32 s10, s57, 12
        v_add_u32 v24, s10, v6
        s_mov_b32 m0, {WST + 4096*g}
        s_add_u32 s57, s57, 1
        s_and_b32 s57, s57, 3
        """)
        for i in range(4): k(f"global_load_lds_dwordx4 v24, s[12:13] offset:{1024*i}")
    k(f"""
    s_load_dwordx2 {sp(EP)}, {sp(WS)}, {ZOFF}
    s_barrier
    v_lshlrev_b32 v28, 8, v4
    v_lshl_add_u32 v28, v3, 3, v28
    v_add_u32 v28, {WST}, v28
    v_xor_b32 v24, v4, v3
    v_lshlrev_b32 v24, 4, v24
    v_lshl_add_u32 v24, v3, 8, v24
    v_add_u32 v24, s11, v24
    v_xor_b32 v25, 64, v24
    v_xor_b32 v26, 128, v24
    v_xor_b32 v27, 192, v24
    ; store address = base + (g%2)*A + (g/2)*B + (l%16)*16
    s_lshr_b32 s10, s9, 1
    s_lshl_b32 s10, s10, 10
    s_and_b32 s11, s9, 1
    s_lshl_b32 s11, s11, 8
    s_add_u32 s10, s10, s11
    s_add_u32 s11, s10, {VIMG}
    s_cmp_eq_u32 s15, 0
    s_cselect_b32 s10, s10, s11
    s_cselect_b32 s11, 512, 8
    s_cselect_b32 s56, 8, 512
    s_cselect_b32 s57, {CSCALE}, 1.0
    v_and_b32 v19, 1, v4
    v_mul_lo_u32 v19, v19, s11
    v_lshrrev_b32 v20, 1, v4
    v_mul_lo_u32 v20, v20, s56
    v_lshl_add_u32 v19, v3, 4, v19
    v_add3_u32 v19, v19, v20, s10
    """)
    stamp(k, 2)
    for g in range(4):
        k(f"s_waitcnt vmcnt({24 - 8*g})")
        if g == 2:
            for r in range(24, 28): k(f"v_add_u32 v{r}, 0x10000, v{r}")
        for i in range(4):
            k(f"ds_read_b128 {vr(64+16*g+4*i,4)}, v{24+i} offset:{32768*(g%2)}")
            k(f"ds_read_b64_tr_b16 {vr(128+16*g+4*i,2)}, v28 offset:{1024*(4*g+i)}")
            k(f"ds_read_b64_tr_b16 {vr(130+16*g+4*i,2)}, v28 offset:{1024*(4*g+i)+128}")
    stamp(k, 3)
    lds_signal(k, C_K)
    k(f"""
    s_cmp_eq_u32 s15, 0
    s_cbranch_scc0 L_kvv
    """)
    for i in range(16): k(f"v_mfma_f32_16x16x32_bf16 v[32:35], {vr(128+4*i,4)}, {vr(64+4*i,4)}, {'0' if i == 0 else 'v[32:35]'}")
    k("s_branch L_kvst\nL_kvv:")
    for i in range(16): k(f"v_mfma_f32_16x16x32_bf16 v[32:35], {vr(64+4*i,4)}, {vr(128+4*i,4)}, {'0' if i == 0 else 'v[32:35]'}")
    k("L_kvst:")
    epoch()
    k(f"""
    s_lshl1_add_u32 s10, s9, s15
    s_lshl_b32 s10, s10, 3
    s_add_u32 s10, s10, {FLKV}
    s_nop 1
    v_mul_f32 v32, s57, v32
    v_mul_f32 v33, s57, v33
    v_mul_f32 v34, s57, v34
    v_mul_f32 v35, s57, v35
    v_cvt_pk_bf16_f32 v32, v32, v33
    v_cvt_pk_bf16_f32 v33, v34, v35
    global_store_dwordx2 v19, v[32:33], {sp(WS)} sc1
    v_mov_b32 v20, s10
    v_mov_b32 v22, s{EP}
    v_mov_b32 v23, s{EP+1}
    """)
    stamp(k, 4)
    k(f"""
    s_waitcnt vmcnt(0)
    s_mov_b64 exec, 1
    global_store_dwordx2 v20, v[22:23], {sp(WS)} sc1
    s_mov_b64 exec, -1
    s_setprio 2
    """)
    stamp(k, 5)
    k("s_branch L_helper2")
    k(f"""
    L_helper:
    s_waitcnt lgkmcnt(0)
    """)
    epoch()
    k(f"""
    L_helper2:
    s_lshl_b32 s10, s8, 2
    s_load_dword s12, {sp(LDT)}, s10
    s_and_b32 s14, s3, 1                ; ch
    s_bfe_u32 s15, s3, 0x10001
    s_lshl_b32 s10, s8, 9
    s_lshl_b32 s11, s14, 8
    s_add_u32 s10, s10, s11
    s_lshl_b32 s11, s15, 7
    s_add_u32 s10, s10, s11
    v_lshlrev_b32 v7, 1, v1
    v_add_u32 v7, s10, v7
    global_load_ushort v16, v7, {sp(ARE)}
    global_load_ushort v17, v7, {sp(AIM)}
    global_load_ushort v18, v7, {sp(BRE)}
    global_load_ushort v19, v7, {sp(BIM)}
    global_load_ushort v20, v7, {sp(CRE)}
    global_load_ushort v21, v7, {sp(CIM)}
    s_waitcnt lgkmcnt(0)
    s_lshl_b32 s10, s14, 4
    s_lshr_b32 s10, s12, s10
    s_lshl_b32 s10, s10, 16
    v_mov_b32 v28, s10
    v_mul_f32 v28, {LOG2E}, v28
    v_exp_f32 v28, v28
    v_cvt_pk_bf16_f32 v28, v28, v28
    v_and_b32 v28, 0xffff0000, v28      ; dt
    s_mul_i32 s56, s14, {TCH}
    s_add_u32 s56, s56, {TAB}
    s_lshl_b32 s11, s15, 8
    s_add_u32 s10, s56, s11
    v_lshlrev_b32 v29, 2, v1
    v_add_u32 v29, s10, v29
    s_waitcnt vmcnt(0)
    """)
    for r in range(16, 22): k(f"v_lshlrev_b32 v{r}, 16, v{r}")
    k(f"""
    v_mul_f32 v16, v16, v28
    v_mul_f32 v17, v17, v28
    v_mul_f32 v16, {LOG2E}, v16
    v_mul_f32 v17, 0.15915494, v17
    """)
    direct(k, 32, 16, 17, "1.0", 30)
    direct(k, 38, 16, 17, "0x41000000", 30)
    direct(k, 40, 16, 17, "0x43800000", 30)
    cmul(k, 42, 20, 18, 30)
    k("v_mul_f32 v42, v42, v28\nv_mul_f32 v43, v43, v28")
    cmul(k, 34, 32, 32, 30)
    cmul(k, 36, 34, 34, 30)
    cmul(k, 48, 38, 38, 30)
    k(f"""
    s_and_b32 s9, s3, 3                 ; v
    v_and_b32 v60, 31, v1               ; cp
    s_lshl_b32 s10, s5, 6
    s_lshl4_add_u32 s10, s9, s10        ; 64slot + 16v
    v_lshl_add_u32 v61, v5, 3, s10      ; t0
    s_lshl_b32 s11, s4, 7
    v_lshl_add_u32 v60, v60, 2, s11
    v_lshl_add_u32 v62, v61, 10, v60
    v_add_u32 v62, 4096, v62
    v_lshlrev_b32 v63, 11, v60
    v_lshl_add_u32 v63, v61, 1, v63
    v_add_u32 v63, {UT}, v63
    """)
    stamp(k, 6)
    lds_wait(k, C_Q, 4, 30, 2)
    for e in range(8): k(f"global_load_dword v{64+e}, v62, {sp(U)} offset:{1024*e - 4096}")
    stamp(k, 7)
    k(f"""
    v_mov_b32 v50, 1.0
    v_mov_b32 v51, 0
    v_mov_b32 v52, v38
    v_mov_b32 v53, v39
    v_add_u32 v27, {32*ROW}, v29
    s_mov_b32 s10, 16
    L_ytab:
    v_cvt_pk_bf16_f32 v56, v50, v51
    v_cvt_pk_bf16_f32 v57, v52, v53
    ds_write2_b32 v27, v56, v57 offset0:0 offset1:{ROW//4}
    """)
    cmul(k, 50, 50, 48, 30)
    cmul(k, 52, 52, 48, 54)
    k(f"""
    v_add_u32 v27, {2*ROW}, v27
    s_sub_u32 s10, s10, 1
    s_cmp_lg_u32 s10, 0
    s_cbranch_scc1 L_ytab
    """)
    rows = {}
    def rowidx(r, h): return 8 * (r // 4) + 4 * h + r % 4
    for h in range(2):
        bases = [4*h + i for i in range(5)] + [256 + 4*h + i for i in (0, 2, 4)] + [512 + 256*h + i for i in (0, 4, 8)] + \
                [1024 + 256*h + i for i in (0, 8)] + [1536 + 256*h + i for i in (0, 8)]
        for r, b in enumerate(bases): rows.setdefault(b, []).append(rowidx(r, h))
    cnt = [0]
    def put(reg, base):
        t = 56 + cnt[0] % 4; cnt[0] += 1
        k(f"v_cvt_pk_bf16_f32 v{t}, v{reg}, -v{reg+1}")
        for ri in rows[base]: k(f"ds_write_b32 v29, v{t} offset:{ri*ROW}")
    steps = {0: (32, 1, 8), 1: (34, 2, 4), 2: (36, 4, 2), 3: (36, 4, 2), 4: (38, 8, 1), 5: (38, 8, 1), 6: (38, 8, 1), 7: (38, 8, 1)}
    for a in range(8):
        put(42, 256 * a)
        e, st, n = steps[a]
        for i in range(1, n + 1):
            cmul(k, 44, 42 if i == 1 else 44, e, 46)
            put(44, 256 * a + st * i)
        if a < 7: cmul(k, 42, 42, 40, 30)
    k(f"""
    ; T1 stores
    s_mov_b32 s10, 0x05040100
    s_mov_b32 s11, 0x07060302
    v_add_u32 v62, 4096, v63
    s_lshl2_add_u32 s12, s8, s9
    s_lshl_b32 s12, s12, 3
    s_add_u32 s12, s12, {FLU}
    v_mov_b32 v61, s12
    v_mov_b32 v22, s{EP}
    v_mov_b32 v23, s{EP+1}
    s_waitcnt vmcnt(0)
    """)
    for e in range(4):
        k(f"v_perm_b32 v{72+e}, v{65+2*e}, v{64+2*e}, s10")
        k(f"v_perm_b32 v{76+e}, v{65+2*e}, v{64+2*e}, s11")
    lds_wait(k, C_A, 4, 30, 2)
    k(f"""
    global_store_dwordx4 v63, v[72:75], {sp(WS)} sc1
    global_store_dwordx4 v62, v[76:79], {sp(WS)} sc1
    s_lshl1_add_u32 s10, s4, s15
    s_lshl_b32 s10, s10, 9
    s_add_u32 s10, s10, {FLU}
    v_lshl_add_u32 v24, v1, 3, s10
    s_lshl1_add_u32 s10, s8, s14
    s_lshl_b32 s10, s10, 12
    s_lshl_b32 s11, s15, 11
    s_add_u32 s10, s10, s11
    s_add_u32 s10, s10, {UT}
    v_add_u32 v25, s10, v6
    s_waitcnt vmcnt(0)
    s_mov_b64 exec, 1
    global_store_dwordx2 v61, v[22:23], {sp(WS)} sc1
    s_mov_b64 exec, -1
    """)
    hsync(k, 30)
    stamp(k, 8)
    k(f"""
    s_cmp_lg_u32 s15, 0
    s_cbranch_scc1 L_nokgen
    v_and_b32 v11, 31, v1
    v_mul_u32_u24 v30, {ROW}, v11
    v_lshl_add_u32 v30, v5, 4, v30
    v_add_u32 v30, s56, v30
    """)
    for kk in range(16):
        k(f"ds_read_b128 {vr(64+8*kk,4)}, v30 offset:{32*kk}")
        k(f"ds_read_b128 {vr(68+8*kk,4)}, v30 offset:{32*ROW+32*kk}")
        if kk >= 4:
            q = kk - 4
            k(f"s_waitcnt lgkmcnt(8)")
            k(f"v_mfma_f32_32x32x16_bf16 v[32:47], {vr(64+8*q,4)}, {vr(68+8*q,4)}, {'0' if q == 0 else 'v[32:47]'}")
    for q in range(12, 16):
        k(f"s_waitcnt lgkmcnt({2*(15-q)})")
        k(f"v_mfma_f32_32x32x16_bf16 v[32:47], {vr(64+8*q,4)}, {vr(68+8*q,4)}, v[32:47]")
    d = lambda r: f"v{32+r}"
    k(f"""
    v_lshlrev_b32 v12, 4, v11
    v_sub_u32 v12, s56, v12             ; E base - 16j
    v_lshlrev_b32 v13, 3, v5
    v_sub_u32 v13, v12, v13             ; - 8h
    v_lshlrev_b32 v14, 9, v5
    v_sub_u32 v14, v12, v14             ; - 512h
    v_and_b32 v15, 1, v1
    v_cmp_eq_u32 vcc, 0, v15
    """)
    pk = lambda dst, lo, hi: k(f"v_cvt_pk_bf16_f32 v{dst}, {lo}, {hi}")
    pk(64, d(4), d(3)); pk(65, d(2), d(1)); pk(66, d(3), d(2)); pk(67, d(1), d(0))
    k(f"ds_write_b64 v13, v[64:65] offset:{4080+8}")
    k(f"ds_write_b64 v13, v[66:67] offset:{KCP+4080+8}")
    pk(68, d(7), d(7)); pk(69, d(6), d(5)); pk(70, d(7), d(6)); pk(71, d(5), d(5))
    k(f"ds_write_b64 v13, v[68:69] offset:{4080+8-512}")
    k(f"ds_write_b64 v13, v[70:71] offset:{KCP+4080+8-512}")
    pk(72, d(10), d(10)); pk(73, d(10), d(9)); pk(74, d(9), d(9)); pk(75, d(8), d(8))
    pk(76, d(10), d(10)); pk(77, d(9), d(9)); pk(78, d(9), d(8)); pk(79, d(8), d(8))
    k(f"ds_write_b128 v14, v[72:75] offset:{4080-1024}")
    k(f"ds_write_b128 v14, v[76:79] offset:{KCP+4080-1024}")
    for (ra, blk, rb) in ((11, 4, 80), (13, 6, 88)):
        a, b = d(ra), d(ra + 1)
        k(f"v_cndmask_b32 v15, {b}, {a}, vcc")
        pk(rb, b, b); pk(rb+1, b, b); pk(rb+2, "v15", a); pk(rb+3, a, a)
        pk(rb+4, b, b); pk(rb+5, b, "v15"); pk(rb+6, a, a); pk(rb+7, a, a)
        k(f"ds_write_b128 v14, {vr(rb,4)} offset:{4080-512*blk}")
        k(f"ds_write_b128 v14, {vr(rb+4,4)} offset:{KCP+4080-512*blk}")
    k(f"""
    v_cvt_pk_bf16_f32 v12, {d(0)}, 0
    v_cmp_eq_u32 vcc, 0, v1
    v_mov_b32 v13, 0
    v_cndmask_b32 v12, v13, v12, vcc
    v_lshlrev_b32 v14, 2, v1
    v_add_u32 v14, s56, v14
    s_mov_b64 exec, 0xff
    ds_write_b32 v14, v12 offset:4096
    ds_write_b32 v14, v13 offset:{KCP+4096}
    s_mov_b64 exec, -1
    L_nokgen:
    ; ---- u image
    v_mov_b32 v36, 0
    v_mov_b32 v37, 0
    v_lshlrev_b32 v31, 3, v1
    v_add_u32 v31, {UIM}, v31
    s_mov_b32 exec_hi, 0x0fffffff
    ds_write_b64 v31, v[36:37]
    ds_write_b64 v31, v[36:37] offset:{UCH}
    s_mov_b64 exec, -1
    s_mul_i32 s10, s14, {UCH}
    s_lshl_b32 s11, s15, 11
    s_add_u32 s10, s10, s11
    s_add_u32 s10, s10, {UIM + 480}
    v_add_u32 v30, s10, v6
    """)
    gpoll(k, 24, 26)
    k(f"""
    global_load_dwordx4 v[16:19], v25, {sp(WS)} sc1
    global_load_dwordx4 v[20:23], v25, {sp(WS)} offset:1024 sc1
    """)
    k(f"""
    v_add_u32 v11, 1, v3
    v_and_b32 v11, 30, v11
    v_lshlrev_b32 v11, 1, v11
    v_lshlrev_b32 v12, 4, v4
    v_sub_u32 v11, v12, v11
    v_and_b32 v12, 1, v3
    v_mul_u32_u24 v12, {KCP}, v12
    v_add_u32 v11, v11, v12
    s_lshl_b32 s11, s15, 8
    s_sub_u32 s10, s56, s11
    s_add_u32 s10, s10, {4064 - 192 - 512}
    v_add_u32 v12, s10, v11
    v_subrev_u32 v13, 1024, v12
    v_subrev_u32 v14, 2048, v12
    v_subrev_u32 v15, 3072, v12
    v_lshlrev_b32 v11, 5, v3
    v_lshl_add_u32 v11, v4, 4, v11
    s_mul_i32 s10, s14, {UCH}
    s_sub_u32 s10, s10, s11
    s_add_u32 s10, s10, {UIM + 448 - 192}
    v_add_u32 v11, s10, v11
    s_waitcnt vmcnt(0)
    ds_write_b128 v30, v[16:19]
    ds_write_b128 v30, v[20:23] offset:1024
    """)
    hsync(k, 30)
    stamp(k, 9)
    ACC = 32; FB = [64, 128]
    def loads(mm, buf):
        L = []
        for i in range(8):
            p, ii = i // 2, i % 2
            o = (3 - mm) * 16 + (1 - ii) * 128
            L.append(f"ds_read_b128 {vr(buf+32+4*i,4)}, v11 offset:{512*i + (3-mm)*64}")
            L.append(f"ds_read2_b32 {vr(buf+4*i,2)}, v{12+p} offset0:{o} offset1:{o+1}")
            L.append(f"ds_read2_b32 {vr(buf+4*i+2,2)}, v{12+p} offset0:{o+2} offset1:{o+3}")
        return L
    for t in loads(0, FB[0]): k(t)
    for mm in range(4):
        buf = FB[mm % 2]
        nxt = loads(mm + 1, FB[(mm + 1) % 2]) if mm < 3 else []
        k("s_waitcnt lgkmcnt(0)")
        seen = set()
        for i in range(8):
            for ct in range(i, 8):
                c = "0" if (mm == 0 and ct not in seen) else vr(ACC + 4*ct, 4)
                seen.add(ct)
                k(f"v_mfma_f32_16x16x32_bf16 {vr(ACC+4*ct,4)}, {vr(buf+4*i,4)}, {vr(buf+32+4*(ct-i),4)}, {c}")
                if nxt: k(nxt.pop(0))
    k(f"""
    s_lshl_b32 s10, s15, 13
    s_add_u32 s10, s10, s56
    s_add_u32 s10, s10, {YPO}
    v_add_u32 v11, s10, v6
    """)
    for ct in range(8): k(f"ds_write_b128 v11, {vr(ACC+4*ct,4)} offset:{1024*ct}")
    k(f"""
    v_bfe_u32 v12, v1, 1, 4
    v_and_b32 v13, 1, v1
    v_lshl_add_u32 v12, v13, 5, v12
    v_lshlrev_b32 v12, 4, v12
    v_lshl_add_u32 v12, v5, 10, v12
    s_lshl_b32 s10, s15, 12
    s_add_u32 s10, s10, s56
    s_add_u32 s10, s10, {YPO}
    v_add_u32 v12, s10, v12
    v_add_u32 v25, {YT - UT}, v25
    s_lshl1_add_u32 s10, s4, s15
    s_lshl_b32 s10, s10, 5
    s_add_u32 s10, s10, s5
    s_lshl1_add_u32 s10, s10, s14
    s_lshl_b32 s10, s10, 3
    s_add_u32 s10, s10, {FLY}
    v_mov_b32 v20, s10
    v_mov_b32 v22, s{EP}
    v_mov_b32 v23, s{EP+1}
    """)
    hsync(k, 30)
    stamp(k, 10)
    for sx in range(2):
        for ds in range(2):
            for e in range(2):
                k(f"ds_read_b128 {vr(32+16*sx+8*ds+4*e,4)}, v12 offset:{ds*8192 + sx*2048 + e*256}")
    lds_signal(k, C_H); k.hs += 1
    for sx in range(2):
        b = 32 + 16*sx
        for i in range(8): k(f"v_add_f32 v{b+i}, v{b+i}, v{b+8+i}")
        for i in range(4): k(f"v_cvt_pk_bf16_f32 v{64+4*sx+i}, v{b+2*i}, v{b+2*i+1}")
        k(f"global_store_dwordx4 v25, {vr(64+4*sx,4)}, {sp(WS)} offset:{1024*sx} sc1")
    k(f"""
    s_waitcnt vmcnt(0)
    s_mov_b64 exec, 1
    global_store_dwordx2 v20, v[22:23], {sp(WS)} sc1
    s_mov_b64 exec, -1
    """)
    srd(k, SL, WO, 524288)
    k(f"""
    v_lshrrev_b32 v20, 3, v1
    v_and_b32 v21, 1, v4
    v_lshlrev_b32 v21, 2, v21
    v_and_b32 v22, 7, v1
    v_xor_b32 v21, v21, v22
    v_lshlrev_b32 v21, 4, v21
    v_lshl_add_u32 v16, v20, 10, v21
    v_add_u32 v17, {8192-1024}, v16
    v_add_u32 v18, {2*(8192-1024)}, v16
    v_add_u32 v19, {3*(8192-1024)}, v16
    s_lshl_b32 s10, s7, 7
    s_lshl_b32 s11, s9, 17
    s_add_u32 s10, s10, s11
    s_lshl_b32 s11, s9, 14
    s_add_u32 s11, s11, {WOI}
    """)
    lds_wait(k, C_H, 4 * k.hs, 30)
    for g in range(4):
        k(f"s_mov_b32 m0, s11\ns_add_u32 s11, s11, 4096")
        for j in range(4): k(f"buffer_load_dwordx4 v{16+j}, s[{SL}:{SL+3}], s10 offen offset:{1024*j} lds")
        if g < 3: k("s_add_u32 s10, s10, 32768")
    k("s_waitcnt vmcnt(0)")
    lds_signal(k, C_H); k.hs += 1
    WOHS = 4 * k.hs
    stamp(k, 11)
    k(f"""
    s_cmp_lg_u32 s15, 0
    s_cbranch_scc0 L_outp
    """)
    k(f"""
    L_red:
    s_xor_b32 s10, s15, 1
    s_lshl2_add_u32 s57, s10, s14
    s_add_u32 s58, s57, 4               ; stop
    L_redloop:
    s_lshl_b32 s10, s57, 4
    v_add_u32 v11, s10, v10
    L_redpoll:
    ds_read_b128 v[12:15], v11 offset:{C_P - CNT}
    s_waitcnt lgkmcnt(0)
    v_and_b32 v12, v12, v13
    v_and_b32 v14, v14, v15
    v_and_b32 v12, v12, v14
    v_readfirstlane_b32 s62, v12
    s_cmp_lg_u32 s62, 0
    s_cbranch_scc1 L_redgo
    s_sub_u32 s{SPIN}, s{SPIN}, 1
    s_cbranch_scc1 {END}
    s_sleep 2
    s_branch L_redpoll
    L_redgo:
    s_mul_i32 s10, s57, {4*PSL}
    v_add_u32 v11, s10, v6
    v_and_b32 v12, 31, v1
    v_lshlrev_b32 v12, 2, v12
    v_add_u32 v12, s10, v12
    """)
    for a in range(4):
        k(f"ds_read_b128 {vr(32+8*a,4)}, v11 offset:{PART + a*PSL}")
        k(f"ds_read_b128 {vr(36+8*a,4)}, v11 offset:{PART + a*PSL + 1024}")
        k(f"ds_read_b32 v{64+a}, v12 offset:{PART + a*PSL + 2048}")
    k(f"""
    s_lshl3_add_u32 s10, s6, s57
    s_lshl3_add_u32 s10, s10, s7
    s_lshl_b32 s11, s10, 10
    s_add_u32 s11, s11, {OFRAG}
    v_add_u32 v13, s11, v6
    s_lshl_b32 s10, s10, 3
    s_add_u32 s10, s10, {FLO}
    v_mov_b32 v14, s10
    v_mov_b32 v22, s{EP}
    v_mov_b32 v23, s{EP+1}
    s_waitcnt lgkmcnt(0)
    v_add_f32 v64, v64, v65
    v_add_f32 v66, v66, v67
    """)
    for i in range(8): k(f"v_add_f32 v{32+i}, v{32+i}, v{40+i}")
    k("v_add_f32 v64, v64, v66")
    for i in range(8): k(f"v_add_f32 v{48+i}, v{48+i}, v{56+i}")
    for i in range(8): k(f"v_add_f32 v{32+i}, v{32+i}, v{48+i}")
    k(f"""
    v_mov_b32 v65, 0x21800000
    v_mov_b32 v66, 0x5d800000
    v_cmp_nge_f32 vcc, v64, v65
    v_cmp_nle_f32 s[10:11], v64, v66
    s_or_b64 vcc, vcc, s[10:11]
    s_cbranch_scc1 L_fallback
    L_rednorm:
    v_rcp_f32 v64, v64
    """)
    for i in range(8): k(f"v_mul_f32 v{32+i}, v{32+i}, v64")
    for i in range(4): k(f"v_cvt_pk_bf16_f32 v{16+i}, v{32+2*i}, v{33+2*i}")
    k(f"""
    global_store_dwordx4 v13, v[16:19], {sp(WS)} sc1
    s_waitcnt vmcnt(0)
    s_mov_b64 exec, 1
    global_store_dwordx2 v14, v[22:23], {sp(WS)} sc1
    s_mov_b64 exec, -1
    s_add_u32 s57, s57, 2
    s_cmp_lt_u32 s57, s58
    s_cbranch_scc1 L_redloop
    """)
    stamp(k, 12)
    k(f"""
    s_cmp_lg_u32 s15, 0
    s_cbranch_scc1 L_t4
    s_cmp_lg_u32 s2, 0
    s_cbranch_scc1 {END}
    s_cmp_lg_u32 s3, 5
    s_cbranch_scc1 {END}
    v_mov_b32 v14, {ZOFF}
    s_mov_b64 exec, 1
    global_store_dwordx2 v14, v[22:23], {sp(WS)}
    s_mov_b64 exec, -1
    s_branch {END}
    """)
    k(f"""
    L_fallback:
    s_lshl_b32 s10, s57, 10
    s_add_u32 s10, s10, {QF}
    v_add_u32 v11, s10, v6
    ds_read_b128 v[16:19], v11
    v_mov_b32 v11, v6
    v_mov_b32 v12, 0xff800000
    s_mov_b32 s10, 64
    L_fb1:
    global_load_dwordx4 v[24:27], v11, {sp(WS)} sc1
    v_add_u32 v11, 1024, v11
    s_waitcnt vmcnt(0) lgkmcnt(0)
    v_mfma_f32_32x32x16_bf16 v[64:79], v[24:27], v[16:19], 0
    s_sub_u32 s10, s10, 1
    s_cmp_lg_u32 s10, 0
    """)
    for i in range(8): k(f"v_max3_f32 v12, v{64+2*i}, v{65+2*i}, v12")
    k(f"""
    s_cbranch_scc1 L_fb1
    v_mov_b32 v15, v12
    v_permlane32_swap_b32 v12, v15
    v_max_f32 v12, v12, v15
    """)
    for i in range(16): k(f"v_sub_f32 v{80+i}, 0, v12")
    for i in range(16): k(f"v_mov_b32 v{32+i}, 0")
    for i in range(8): k(f"v_mov_b32 v{96+i}, 0x3f803f80")
    k(f"""
    v_mov_b32 v15, 0xdddddddd
    v_mov_b32 v11, v6
    v_lshlrev_b32 v12, 9, v5
    v_lshl_add_u32 v12, v3, 4, v12
    v_add_u32 v12, {VIMG}, v12
    s_mov_b32 s10, 64
    L_fb2:
    global_load_dwordx4 v[24:27], v11, {sp(WS)} sc1
    s_mov_b32 exec_lo, 0xffff
    s_mov_b32 exec_hi, 0xffff
    global_load_dwordx4 v[96:99], v12, {sp(WS)} sc1
    global_load_dwordx4 v[100:103], v12, {sp(WS)} offset:256 sc1
    s_mov_b64 exec, -1
    v_add_u32 v11, 1024, v11
    v_add_u32 v12, 1024, v12
    s_waitcnt vmcnt(0)
    v_mfma_f32_32x32x16_bf16 v[64:79], v[24:27], v[16:19], v[80:95]
    s_sub_u32 s10, s10, 1
    s_cmp_lg_u32 s10, 0
    """)
    for i in range(16): k(f"v_exp_f32 v{64+i}, v{64+i}")
    k(f"""
    v_smfmac_f32_32x32x32_bf16 v[32:47], v[96:99], v[64:71], v15
    v_smfmac_f32_32x32x32_bf16 v[32:47], v[100:103], v[72:79], v15
    s_nop 7
    s_nop 7
    s_cbranch_scc1 L_fb2
    v_mov_b32 v64, v40
    s_branch L_rednorm
    """)
    k(f"""
    L_outp:
    v_lshrrev_b32 v20, 2, v3
    v_lshl_add_u32 v20, v5, 2, v20
    v_lshlrev_b32 v20, 7, v20
    v_lshrrev_b32 v21, 3, v3
    v_xor_b32 v21, s14, v21
    v_lshl_add_u32 v20, v21, 6, v20
    v_and_b32 v21, 1, v4
    v_lshl_add_u32 v20, v21, 5, v20
    v_and_b32 v21, 3, v1
    v_lshl_add_u32 v20, v21, 3, v20
    v_add_u32 v20, {WOI}, v20
    s_lshl1_add_u32 s10, s6, s15        ; 2qb+qh
    s_lshl_b32 s11, s10, 15
    s_add_u32 s11, s11, {OFRAG + 4096}
    v_add_u32 v21, s11, v6
    s_lshl_b32 s11, s10, 8
    s_add_u32 s11, s11, {FLO}
    v_and_b32 v24, 7, v1
    v_lshlrev_b32 v24, 3, v24
    v_add_u32 v24, s11, v24
    """)
    for i in range(8): k(f"v_mov_b64 {vr(32+2*i,2)}, 0")
    lds_wait(k, C_H, WOHS, 30)
    k(f"""
    s_mov_b32 s57, 4
    L_oploop:
    """)
    for p in range(8):
        k(f"ds_read_b64_tr_b16 {vr(96+4*p,2)}, v20 offset:{p*8192}")
        k(f"ds_read_b64_tr_b16 {vr(98+4*p,2)}, v20 offset:{p*8192+1024}")
    k(f"""
    L_oppoll:
    global_load_dwordx2 v[26:27], v24, {sp(WS)} sc1
    s_waitcnt vmcnt(0)
    v_cmp_ne_u64 vcc, {sp(EP)}, v[26:27]
    s_cbranch_vccz L_opgo
    s_sub_u32 s{SPIN}, s{SPIN}, 1
    s_cbranch_scc1 {END}
    s_sleep 2
    s_branch L_oppoll
    L_opgo:
    """)
    for p in range(8): k(f"global_load_dwordx4 {vr(64+4*p,4)}, v21, {sp(WS)} offset:{1024*p - 4096} sc1")
    k(f"""
    v_add_u32 v20, 2048, v20
    v_add_u32 v21, 8192, v21
    v_add_u32 v24, 64, v24
    s_sub_u32 s57, s57, 1
    s_waitcnt lgkmcnt(0)
    """)
    for p in range(8):
        k(f"s_waitcnt vmcnt({7-p})")
        k(f"v_mfma_f32_32x32x16_bf16 v[32:47], {vr(96+4*p,4)}, {vr(64+4*p,4)}, v[32:47]")
    k(f"""
    s_cmp_lg_u32 s57, 0
    s_cbranch_scc1 L_oploop
    v_and_b32 v11, 31, v1
    v_lshlrev_b32 v11, 11, v11
    v_lshl_add_u32 v11, v5, 4, v11
    s_lshl_b32 s10, s10, 16
    s_lshl_b32 s11, s7, 7
    s_add_u32 s10, s10, s11
    s_lshl_b32 s11, s14, 6
    s_add_u32 s10, s10, s11
    v_add_u32 v11, s10, v11
    """)
    for i in range(8): k(f"v_cvt_pk_bf16_f32 v{16+i}, v{32+2*i}, v{33+2*i}")
    k(f"""
    v_permlane32_swap_b32 v16, v18
    v_permlane32_swap_b32 v17, v19
    v_permlane32_swap_b32 v20, v22
    v_permlane32_swap_b32 v21, v23
    global_store_dwordx4 v11, v[16:19], {sp(OUT)} offset:1024
    global_store_dwordx4 v11, v[20:23], {sp(OUT)} offset:1056
    """)
    stamp(k, 13)
    k(f"""
    s_cmp_lg_u32 s15, 0
    s_cbranch_scc1 {END}
    L_t4:
    v_and_b32 v16, 31, v1               ; cp
    s_lshl_b32 s10, s5, 6
    s_lshl4_add_u32 s10, s9, s10        ; 64slot + 16v
    v_lshl_add_u32 v17, v5, 3, s10      ; t0
    s_lshl_b32 s11, s4, 7
    v_lshl_add_u32 v18, v16, 2, s11
    global_load_dword v24, v18, {sp(DSK)}
    v_lshl_add_u32 v19, v17, 10, v18
    v_add_u32 v19, 4096, v19
    """)
    for e in range(8): k(f"global_load_dword v{32+e}, v19, {sp(U)} offset:{1024*e - 4096}")
    k(f"""
    v_lshlrev_b32 v20, 11, v18
    v_lshl_add_u32 v20, v17, 1, v20
    v_add_u32 v20, {YT}, v20
    v_add_u32 v21, 4096, v20
    v_lshl_add_u32 v19, v17, 11, v18
    v_add_u32 v19, 4096, v19
    v_add_u32 v25, 8192, v19
    s_lshr_b32 s10, s5, 4
    s_lshl1_add_u32 s10, s4, s10
    s_lshl_b32 s10, s10, 9
    s_add_u32 s10, s10, {FLY}
    v_lshl_add_u32 v22, v1, 3, s10
    """)
    gpoll(k, 22, 26)
    k(f"""
    global_load_dwordx4 v[40:43], v20, {sp(WS)} sc1
    global_load_dwordx4 v[44:47], v21, {sp(WS)} sc1
    v_lshlrev_b32 v22, 16, v24
    v_and_b32 v23, 0xffff0000, v24
    """)
    for e in range(8):
        k(f"""
        v_lshlrev_b32 v12, 16, v{32+e}
        v_and_b32 v13, 0xffff0000, v{32+e}
        v_mul_f32 v12, v22, v12
        v_mul_f32 v13, v23, v13
        v_cvt_pk_bf16_f32 v{32+e}, v12, v13
        """)
    k("s_waitcnt vmcnt(0)")
    for e in range(8):
        ex = (lambda d, r: f"v_lshlrev_b32 v{d}, 16, v{r}") if e % 2 == 0 else (lambda d, r: f"v_and_b32 v{d}, 0xffff0000, v{r}")
        k(ex(12, 40 + e//2)); k(ex(13, 44 + e//2))
        k(f"""
        v_lshlrev_b32 v14, 16, v{32+e}
        v_and_b32 v15, 0xffff0000, v{32+e}
        v_add_f32 v12, v12, v14
        v_add_f32 v13, v13, v15
        v_cvt_pk_bf16_f32 v{48+e}, v12, v13
        global_store_dword v{19 if e < 4 else 25}, v{48+e}, {sp(OUT)} offset:{2048*(e%4) - 4096}
        """)
    k(f"""
    s_cmp_lg_u32 s15, 0
    s_cbranch_scc1 L_outp
    s_branch L_red
    """)
    QR, OA, SX_, SY_, KR, VR = 12, 16, 32, 48, 64, 128
    k(f"""
    L_attn:
    s_mov_b32 vcc_lo, 0x00110011
    s_mov_b32 vcc_hi, 0x00110011
    v_mov_b32 v12, 0x3f803f80
    v_cndmask_b32 v12, 0, v12, vcc
    v_mov_b32 v13, v12
    """)
    for t in range(16):
        for i in range(2): k(f"v_mov_b64 {vr(VR+8*t+4+2*i,2)}, v[12:13]")
    k(f"""
    s_and_b32 s9, s3, 1                 ; qh
    s_lshr_b32 s10, s3, 1               ; nt
    v_and_b32 v11, 31, v1
    s_lshl_b32 s12, s9, 5
    v_add_u32 v11, s12, v11             ; row
    v_xor_b32 v12, v5, v3
    v_lshlrev_b32 v12, 4, v12
    v_lshl_add_u32 v32, v11, 8, v12
    """)
    for j in range(1, 8): k(f"v_xor_b32 v{32+j}, {32*j}, v32")
    k(f"""
    v_lshrrev_b32 v40, 2, v3
    v_lshl_add_u32 v40, v5, 3, v40
    v_lshlrev_b32 v40, 7, v40
    v_lshrrev_b32 v41, 3, v3
    v_xor_b32 v41, s10, v41
    v_lshl_add_u32 v40, v41, 6, v40
    v_and_b32 v41, 1, v4
    v_lshl_add_u32 v40, v41, 5, v40
    v_and_b32 v41, 3, v1
    v_lshl_add_u32 v40, v41, 3, v40
    v_add_u32 v40, 16384, v40
    """)
    for i in range(8): k(f"v_mov_b64 {vr(OA+2*i,2)}, 0")
    k(f"""
    s_waitcnt lgkmcnt(0)
    s_load_dwordx2 {sp(EP)}, {sp(WS)}, {ZOFF}
    s_barrier
    """)
    stamp(k, 2)
    k(f"""
    s_mov_b32 s13, 1
    L_qloop:
    ds_read_b128 v[44:47], v10
    s_waitcnt lgkmcnt(0)
    v_lshlrev_b32 v46, 2, v46
    v_min3_u32 v42, v44, v45, v46
    v_readfirstlane_b32 s62, v42
    s_cmp_ge_u32 s62, s13
    s_cbranch_scc1 L_qgo
    s_sub_u32 s{SPIN}, s{SPIN}, 1
    s_cbranch_scc1 {END}
    s_sleep 1
    s_branch L_qloop
    L_qgo:
    """)
    for j in range(8):
        k(f"ds_read_b128 {vr(64+8*j,4)}, v{32+j}")
        k(f"ds_read_b64_tr_b16 {vr(68+8*j,2)}, v40 offset:{j*2048}")
        k(f"ds_read_b64_tr_b16 {vr(70+8*j,2)}, v40 offset:{j*2048+512}")
        if j >= 3:
            q = j - 3
            k(f"s_waitcnt lgkmcnt(9)")
            k(f"v_mfma_f32_32x32x16_bf16 {vr(OA,16)}, {vr(68+8*q,4)}, {vr(64+8*q,4)}, {vr(OA,16)}")
    for q in range(5, 8):
        k(f"s_waitcnt lgkmcnt({3*(7-q)})")
        k(f"v_mfma_f32_32x32x16_bf16 {vr(OA,16)}, {vr(68+8*q,4)}, {vr(64+8*q,4)}, {vr(OA,16)}")
    for j in range(9): k(f"v_add_u32 v{32+j}, 0x8000, v{32+j}")
    k(f"""
    s_add_u32 s13, s13, 1
    s_cmp_le_u32 s13, 4
    s_cbranch_scc1 L_qloop
    """)
    stamp(k, 3)
    epoch()
    k(f"""
    s_lshl_b32 s12, s3, 9
    s_add_u32 s12, s12, {FLKV}
    v_lshlrev_b32 v11, 3, v1
    v_add_u32 v11, s12, v11
    global_load_dwordx2 v[42:43], v11, {sp(WS)} sc1
    s_lshl1_add_u32 s12, s9, s10
    s_lshl_b32 s12, s12, 11
    s_add_u32 s12, s12, {QF}
    v_add_u32 v12, s12, v6
    """)
    for i in range(8): k(f"v_cvt_pk_bf16_f32 v{32+i}, v{OA+2*i}, v{OA+2*i+1}")
    k(f"""
    ds_write_b128 v12, v[32:35]
    ds_write_b128 v12, v[36:39] offset:1024
    """)
    lds_signal(k, C_Q)
    k(f"""
    s_lshl_b32 s12, s3, 14
    s_add_u32 s12, s12, 4096
    v_add_u32 v0, s12, v6
    v_add_u32 v3, {VIMG}, v0            ; V addr
    v_add_u32 v4, 8192, v0
    v_add_u32 v5, 8192, v3
    v_add_u32 v7, {QF}, v6
    s_mul_i32 s12, s3, {PSL}
    v_add_u32 v8, s12, v6
    v_and_b32 v2, 31, v1
    v_lshlrev_b32 v2, 2, v2
    v_add_u32 v2, s12, v2
    """)
    for i in range(8): k(f"v_mov_b64 {vr(OA+2*i,2)}, 0")
    lds_wait(k, C_Q, 4, 44)
    k(f"""
    ds_read_b128 {vr(QR,4)}, v7
    s_branch L_kvchk
    L_kvpoll:
    s_sub_u32 s{SPIN}, s{SPIN}, 1
    s_cbranch_scc1 {END}
    s_sleep 1
    global_load_dwordx2 v[42:43], v11, {sp(WS)} sc1
    L_kvchk:
    s_waitcnt vmcnt(0)
    v_cmp_ne_u64 vcc, {sp(EP)}, v[42:43]
    s_cbranch_vccnz L_kvpoll
    """)
    stamp(k, 4)
    PRE = 6
    def kvload(t):
        k(f"global_load_dwordx4 {vr(KR+4*t,4)}, v{0 if t < 8 else 4}, {sp(WS)} offset:{1024*(t%8) - 4096} sc1")
        k(f"global_load_dwordx4 {vr(VR+8*t,4)}, v{3 if t < 8 else 5}, {sp(WS)} offset:{1024*(t%8) - 4096} sc1")
    for t in range(PRE): kvload(t)
    k("v_mov_b32 v11, 0xdddddddd")
    stamp(k, 5)
    k(f"""
    s_waitcnt vmcnt({2*PRE-1}) lgkmcnt(0)
    v_mfma_f32_32x32x16_bf16 {vr(SX_,16)}, {vr(KR,4)}, {vr(QR,4)}, 0
    """)
    stamp(k, 6)
    def flush():
        k(f"""
        ds_write_b128 v8, {vr(OA,4)} offset:{PART}
        ds_write_b128 v8, {vr(OA+4,4)} offset:{PART+1024}
        ds_write_b32 v2, v{OA+8} offset:{PART+2048}
        ds_write_b32 v10, v9 offset:{C_P - CNT}
        """)
    def rowpass(first):
        for t in range(16):
            Xb, Yb = (SX_, SY_) if t % 2 == 0 else (SY_, SX_)
            e = lambda i: k(f"v_exp_f32 v{Xb+i}, v{Xb+i}")
            if first and t + PRE < 16: kvload(t + PRE)
            if first and t + PRE == 16:
                k(f"s_mov_b64 exec, 1\nds_add_u32 v10, v9 offset:{C_A - CNT}\ns_mov_b64 exec, -1")
                k("s_lshl_b32 s12, s3, 2\nv_add_u32 v10, s12, v10")
            e(0); e(1)
            if not (first and t == 0):
                k(f"v_smfmac_f32_32x32x32_bf16 {vr(OA,16)}, {vr(VR+8*((t-1)%16)+4,4)}, {vr(Yb+8,8)}, v11")
            e(2); e(3); e(4)
            if first:
                issued = 2 * min(16, t + PRE + 1)
                needed = 2 * (t + 1) + 1 if t < 15 else 32
                k(f"s_waitcnt vmcnt({issued - needed})")
            if t == 15: k("s_waitcnt lgkmcnt(0)")
            k(f"v_mfma_f32_32x32x16_bf16 {vr(Yb,16)}, {vr(KR+4*((t+1)%16),4)}, {vr(QR,4)}, 0")
            if t == 14:
                k(f"v_add_u32 v7, 1024, v7")
                k(f"ds_read_b128 {vr(QR,4)}, v7")
            if first:
                for i in range(4): k(f"v_permlane16_swap_b32 v{VR+8*t+i}, v{VR+8*t+4+i}")
            pva = f"v_smfmac_f32_32x32x32_bf16 {vr(OA,16)}, {vr(VR+8*t,4)}, {vr(Xb,8)}, v11"
            if t == 0 and not first:
                for i in range(5, 13): e(i)
                flush()
                for i in range(5): k(f"v_mov_b64 {vr(OA+2*i,2)}, 0")
                e(13); e(14); k(pva); e(15)
            else:
                for i in range(5, 10): e(i)
                k(pva)
                for i in range(10, 16): e(i)
                if t == 1 and not first:
                    k(f"v_add_u32 v8, {4*PSL}, v8\nv_add_u32 v2, {4*PSL}, v2\nv_add_u32 v10, 16, v10")
    rowpass(True)
    stamp(k, 7)
    k("s_mov_b32 s13, 7\n.p2align 6\nL_aloop:")
    rowpass(False)
    k(f"""
    s_sub_u32 s13, s13, 1
    s_cmp_lg_u32 s13, 0
    s_cbranch_scc1 L_aloop
    v_smfmac_f32_32x32x32_bf16 {vr(OA,16)}, {vr(VR+8*15+4,4)}, {vr(SY_+8,8)}, v11
    """)
    flush()
    stamp(k, 8)
    k(f"{END}:")
    stamp_flush(k)
    k("L_exit:\ns_endpgm")
    return k

def main(path):
    k = gen()
    out = HDR
    out += f"; @launch grid=(256,1,1) block=(512,1,1) lds={LDS}\n"
    out += '.amdgcn_target "amdgcn-amd-amdhsa--gfx950"\n'
    t, kd = k.finish(256, 102, accum=256)
    out += t + kd
    print(k.name, k.info, "lds", LDS)
    open(path, "w").write(out)

if __name__ == "__main__":
    if len(sys.argv) > 2: STAMP = True
    main(sys.argv[1] if len(sys.argv) > 1 else "cdna_kernels/%s.s" % NAME)
```

```python
import sys
sys.path.insert(0, "gen")
from asmlib import *

NAME = "concat_heads__ssm_conv_s4__grouped_kv_mqa__prompt"
HDR = open("cdna_kernels/%s.s.ref" % NAME).read().split("; Override launch")[0]
U, ARE, AIM, BRE, BIM, CRE, CIM, LDT, DSK, X, WQ, WK, WV, WO, OUT, DBG, WS = [16 + 2 * i for i in range(17)]
EP = 50
def sp(b): return "s[%d:%d]" % (b, b + 1)
def vr(b, n): return "v[%d:%d]" % (b, b + n - 1) if n > 1 else "v%d" % b
LOG2E = 0x3fb8aa3b
CSCALE = 0x3eb8aa3b
KIMG, VIMG, ZOFF, FLKV, FLO, OFRAG = 0, 0x10000, 0x20000, 0x21000, 0x22000, 0x40000
FLU, FLY, UT, YT = 0x26000, 0x28000, 0x300000, 0x500000
WST, QF, CNT = 131072, 147456, 155648
C_X, C_W, C_K, C_Q, C_H, C_A, C_P = CNT, CNT + 4, CNT + 8, CNT + 16, CNT + 20, CNT + 24, CNT + 64
PART, PSL = 0, 2176
TAB = 69632; ROW = 528; TCH = 64 * ROW
KCP = 4160; YPO = 8448
UIM = TAB + 2 * TCH; UCH = 4576
WOI = 69632
LDS = CNT + 256
SPIN = 63

STAMP = False
def stamp(k, i, real=False):
    if not STAMP: return
    k(f"{'s_memrealtime' if real else 's_memtime'} s[{66+2*i}:{67+2*i}]")
NST = 16
def stamp_flush(k):
    if not STAMP: return
    stamp(k, 14); stamp(k, 15, True)
    k("s_waitcnt vmcnt(0) lgkmcnt(0)")
    k("s_mov_b64 exec, 1\nv_mov_b32 v2, 0\ns_not_b32 s64, s66\nv_mov_b32 v3, s64")
    k(f"global_atomic_umax v2, v3, {sp(DBG)}")
    k(f"v_mov_b32 v3, s96\nglobal_atomic_umax v2, v3, {sp(DBG)} offset:4")
    k(f"v_mov_b32 v3, s66\nglobal_atomic_umax v2, v3, {sp(DBG)} offset:8")
    L = k.label("nd")
    k(f"s_cmp_lg_u32 s2, 77\ns_cbranch_scc1 {L}\ns_cmp_lg_u32 s3, 0\ns_cbranch_scc1 {L}")
    for i in range(2, 9):
        k(f"s_sub_u32 s64, s{66+2*i}, s68\nv_mov_b32 v3, s64\nglobal_store_dword v2, v3, {sp(DBG)} offset:{4*(i+1)}")
    k(f"{L}:")
    L = k.label("nd")
    k(f"s_cmp_lg_u32 s2, 77\ns_cbranch_scc1 {L}\ns_cmp_lg_u32 s3, 7\ns_cbranch_scc1 {L}")
    for n, i in enumerate((5, 9, 10, 11, 12, 13)):
        k(f"s_sub_u32 s64, s{66+2*i}, s68\nv_mov_b32 v3, s64\nglobal_store_dword v2, v3, {sp(DBG)} offset:{4*(n+10)}")
    k(f"{L}:")
    k("s_waitcnt vmcnt(0)")

def cmul(k, r, x, y, t):
    k(f"v_pk_mul_f32 {vr(t,2)}, {vr(x,2)}, {vr(y,2)} op_sel:[0,0] op_sel_hi:[1,0]")
    k(f"v_pk_fma_f32 {vr(r,2)}, {vr(x,2)}, {vr(y,2)}, {vr(t,2)} op_sel:[1,1,0] op_sel_hi:[0,1,1] neg_lo:[1,0,0]")

def direct(k, r, al, be, lam, t):
    if lam == "1.0":
        k(f"v_exp_f32 v{t}, v{al}")
        k(f"v_fract_f32 v{t+1}, v{be}")
    else:
        k(f"v_mul_f32 v{t}, {lam}, v{al}")
        k(f"v_mul_f32 v{t+1}, {lam}, v{be}")
        k(f"v_exp_f32 v{t}, v{t}")
        k(f"v_fract_f32 v{t+1}, v{t+1}")
    k(f"v_cos_f32 v{r}, v{t+1}")
    k(f"v_sin_f32 v{r+1}, v{t+1}")
    k(f"v_mul_f32 v{r}, v{r}, v{t}")
    k(f"v_mul_f32 v{r+1}, v{r+1}, v{t}")

def srd(k, s, ptr, nbytes):
    k(f"s_mov_b32 s{s}, s{ptr}\ns_and_b32 s{s+1}, s{ptr+1}, 0xffff\ns_mov_b32 s{s+2}, {nbytes}\ns_mov_b32 s{s+3}, 0x20000")

END = "L_end"
def lds_signal(k, off):
    k(f"""
    s_waitcnt lgkmcnt(0)
    s_mov_b64 exec, 1
    ds_add_u32 v10, v9 offset:{off - CNT}
    s_mov_b64 exec, -1
    """)
def lds_wait(k, off, target, tv, sleep=1):
    L = k.label("lw"); D = k.label("lwd")
    k(f"""
    {L}:
    ds_read_b32 v{tv}, v10 offset:{off - CNT}
    s_waitcnt lgkmcnt(0)
    v_readfirstlane_b32 s62, v{tv}
    s_cmp_ge_u32 s62, {target}
    s_cbranch_scc1 {D}
    s_sub_u32 s{SPIN}, s{SPIN}, 1
    s_cbranch_scc1 {END}
    s_sleep {sleep}
    s_branch {L}
    {D}:
    """)
def gpoll(k, av, tv, sleep=2):
    L = k.label("gp"); D = k.label("gpd")
    k(f"""
    {L}:
    global_load_dwordx2 {vr(tv,2)}, v{av}, {sp(WS)} sc1
    s_waitcnt vmcnt(0)
    v_cmp_ne_u64 vcc, {sp(EP)}, {vr(tv,2)}
    s_cbranch_vccz {D}
    s_sub_u32 s{SPIN}, s{SPIN}, 1
    s_cbranch_scc1 {END}
    s_sleep {sleep}
    s_branch {L}
    {D}:
    """)
def hsync(k, tv):
    k.hs = getattr(k, "hs", 0) + 1
    lds_signal(k, C_H)
    lds_wait(k, C_H, 4 * k.hs, tv)

def gen():
    k = K(NAME + "_kernel")
    k(f"""
    s_cmp_ge_u32 s2, 256
    s_cbranch_scc1 L_exit
    s_load_dwordx16 s[32:47], s[0:1], 64
    s_load_dwordx2 s[48:49], s[0:1], 128
    s_load_dwordx16 s[16:31], s[0:1], 0
    """)
    stamp(k, 0, True); stamp(k, 1)
    if STAMP:
        for i in range(2, 14): k(f"s_mov_b32 s{66+2*i}, 0")
    k(f"""
    v_lshrrev_b32 v2, 6, v0
    v_and_b32 v1, 63, v0                ; lane
    v_readfirstlane_b32 s3, v2
    s_and_b32 s4, s2, 7
    s_lshr_b32 s5, s2, 3
    s_lshr_b32 s6, s5, 3
    s_lshl2_add_u32 s6, s4, s6          ; qb
    s_and_b32 s7, s5, 7                 ; hg
    s_lshl_b32 s8, s4, 5
    s_add_u32 s8, s8, s5
    s_mov_b32 s{SPIN}, 0x40000
    v_and_b32 v3, 15, v1                ; l%16
    v_lshrrev_b32 v4, 4, v1             ; l/16
    v_lshrrev_b32 v5, 5, v1             ; h
    v_lshlrev_b32 v6, 4, v1             ; lane*16
    v_mov_b32 v9, 1
    v_mov_b32 v10, {CNT}
    v_mov_b32 v7, 0
    v_lshl_add_u32 v8, v1, 2, v10
    ds_write_b32 v8, v7
    s_cmp_lt_u32 s3, 4
    s_cbranch_scc1 L_attn
    s_setprio 2
    s_cmp_eq_u32 s3, 4
    s_cbranch_scc1 L_kvproj
    s_cmp_eq_u32 s3, 5
    s_cbranch_scc1 L_w5
    """)
    def epoch():
        k(f"""
        s_mul_i32 s{EP}, s{EP}, 0x9e3779b1
        s_add_u32 s{EP}, s{EP}, 0x7f4a7c15
        s_xor_b32 s{EP+1}, s{EP+1}, s{EP}
        s_mul_i32 s{EP+1}, s{EP+1}, 0x85ebca6b
        s_add_u32 s{EP+1}, s{EP+1}, 0x2545f491
        """)
    SL = 52
    def xvoff():
        for j in range(4):
            k(f"""
            v_add_u32 v20, {4*j}, v4
            v_xor_b32 v21, v20, v3
            v_lshlrev_b32 v21, 4, v21
            v_lshl_add_u32 v{16+j}, v20, 10, v21
            """)
            if j: k(f"v_subrev_u32 v{16+j}, {1024*j}, v{16+j}")
    def dma4():
        for j in range(4): k(f"buffer_load_dwordx4 v{16+j}, s[{SL}:{SL+3}], s10 offen offset:{1024*j} lds")
    k(f"""
    s_and_b32 s9, s7, 3
    s_cmp_eq_u32 s3, 7
    s_cbranch_scc1 L_ldw
    """)
    xvoff()
    k(f"""
    s_lshl_b32 s56, s6, 16
    s_mov_b32 s11, 0                    ; m0
    s_mov_b32 s12, 16384
    s_mov_b32 s13, 8
    s_mov_b32 s57, s9
    s_waitcnt lgkmcnt(0)
    """)
    srd(k, SL, X, 2097152)
    k(f"""
    s_branch L_ldgo
    L_ldw:
    v_lshrrev_b32 v20, 3, v1
    v_and_b32 v21, 1, v4
    v_lshlrev_b32 v21, 2, v21
    v_and_b32 v22, 7, v1
    v_xor_b32 v21, v21, v22
    v_lshlrev_b32 v21, 4, v21
    v_lshl_add_u32 v16, v20, 10, v21
    v_add_u32 v17, {8192-1024}, v16
    v_add_u32 v18, {2*(8192-1024)}, v16
    v_add_u32 v19, {3*(8192-1024)}, v16
    s_lshl_b32 s56, s7, 7
    s_mov_b32 s11, 16384
    s_mov_b32 s12, 32768
    s_mov_b32 s13, 17
    s_mov_b32 s57, 4
    s_waitcnt lgkmcnt(0)
    """)
    srd(k, SL, WQ, 524288)
    k(f"""
    L_ldgo:
    s_load_dwordx2 {sp(EP)}, {sp(WS)}, {ZOFF}
    s_mov_b32 s14, 0
    """)
    stamp(k, 2)
    k(f"""
    L_ldchunk:
    s_lshl_b32 s10, s9, s13
    s_add_u32 s10, s10, s56
    s_add_u32 s9, s9, 1
    s_and_b32 s9, s9, 3
    s_mov_b32 s15, 0
    L_ldloop:
    s_mov_b32 m0, s11
    s_add_u32 s11, s11, 4096
    s_cmp_eq_u32 s15, s57
    s_cbranch_scc1 L_ldskip
    """)
    dma4()
    k(f"""
    L_ldskip:
    s_add_u32 s10, s10, s12
    s_add_u32 s14, s14, 1
    s_and_b32 s15, s14, 3
    s_cbranch_scc1 L_ldloop
    s_add_u32 s11, s11, 16384
    s_cmp_eq_u32 s14, 4
    s_cbranch_scc0 L_ldnobar
    s_barrier
    L_ldnobar:
    s_cmp_lt_u32 s14, 16
    s_cbranch_scc1 L_ldchunk
    """)
    stamp(k, 3)
    k("s_cmp_eq_u32 s3, 7\ns_cbranch_scc1 L_ldw2")
    for c in range(4):
        k(f"s_waitcnt vmcnt({36 - 12*c})")
        lds_signal(k, C_X)
    stamp(k, 5)
    k("s_branch L_helper\nL_ldw2:")
    for c in range(4):
        k(f"s_waitcnt vmcnt({48 - 16*c})")
        lds_signal(k, C_W)
        if c == 0: stamp(k, 4)
    stamp(k, 5)
    k(f"""
    s_branch L_helper
    L_w5:
    s_waitcnt lgkmcnt(0)
    s_load_dwordx2 {sp(EP)}, {sp(WS)}, {ZOFF}
    s_barrier
    s_branch L_helper
    L_kvproj:
    s_setprio 3
    """)
    xvoff()
    k(f"""
    s_and_b32 s14, s7, 3
    s_lshl2_add_u32 s9, s6, s14         ; G
    s_lshr_b32 s15, s7, 2               ; kind
    s_lshl_b32 s56, s9, 14
    s_lshl_b32 s11, s14, 12
    s_mov_b32 s57, s14
    s_waitcnt lgkmcnt(0)
    s_cmp_eq_u32 s15, 0
    s_cselect_b32 s12, s{WK}, s{WV}
    s_cselect_b32 s13, s{WK+1}, s{WV+1}
    """)
    srd(k, SL, X, 2097152)
    for g in range(4):
        k(f"""
        s_add_u32 m0, s11, {32768*g}
        s_lshl_b32 s10, s57, 8
        s_add_u32 s10, s10, s56
        """)
        dma4()
        k(f"""
        s_lshl_b32 s10, s57, 12
        v_add_u32 v24, s10, v6
        s_mov_b32 m0, {WST + 4096*g}
        s_add_u32 s57, s57, 1
        s_and_b32 s57, s57, 3
        """)
        for i in range(4): k(f"global_load_lds_dwordx4 v24, s[12:13] offset:{1024*i}")
    k(f"""
    s_load_dwordx2 {sp(EP)}, {sp(WS)}, {ZOFF}
    s_barrier
    v_lshlrev_b32 v28, 8, v4
    v_lshl_add_u32 v28, v3, 3, v28
    v_add_u32 v28, {WST}, v28
    v_xor_b32 v24, v4, v3
    v_lshlrev_b32 v24, 4, v24
    v_lshl_add_u32 v24, v3, 8, v24
    v_add_u32 v24, s11, v24
    v_xor_b32 v25, 64, v24
    v_xor_b32 v26, 128, v24
    v_xor_b32 v27, 192, v24
    ; store address = base + (g%2)*A + (g/2)*B + (l%16)*16
    s_lshr_b32 s10, s9, 1
    s_lshl_b32 s10, s10, 10
    s_and_b32 s11, s9, 1
    s_lshl_b32 s11, s11, 8
    s_add_u32 s10, s10, s11
    s_add_u32 s11, s10, {VIMG}
    s_cmp_eq_u32 s15, 0
    s_cselect_b32 s10, s10, s11
    s_cselect_b32 s11, 512, 8
    s_cselect_b32 s56, 8, 512
    s_cselect_b32 s57, {CSCALE}, 1.0
    v_and_b32 v19, 1, v4
    v_mul_lo_u32 v19, v19, s11
    v_lshrrev_b32 v20, 1, v4
    v_mul_lo_u32 v20, v20, s56
    v_lshl_add_u32 v19, v3, 4, v19
    v_add3_u32 v19, v19, v20, s10
    """)
    stamp(k, 2)
    for g in range(4):
        k(f"s_waitcnt vmcnt({24 - 8*g})")
        if g == 2:
            for r in range(24, 28): k(f"v_add_u32 v{r}, 0x10000, v{r}")
        for i in range(4):
            k(f"ds_read_b128 {vr(64+16*g+4*i,4)}, v{24+i} offset:{32768*(g%2)}")
            k(f"ds_read_b64_tr_b16 {vr(128+16*g+4*i,2)}, v28 offset:{1024*(4*g+i)}")
            k(f"ds_read_b64_tr_b16 {vr(130+16*g+4*i,2)}, v28 offset:{1024*(4*g+i)+128}")
    stamp(k, 3)
    lds_signal(k, C_K)
    k(f"""
    s_cmp_eq_u32 s15, 0
    s_cbranch_scc0 L_kvv
    """)
    for i in range(16): k(f"v_mfma_f32_16x16x32_bf16 v[32:35], {vr(128+4*i,4)}, {vr(64+4*i,4)}, {'0' if i == 0 else 'v[32:35]'}")
    k("s_branch L_kvst\nL_kvv:")
    for i in range(16): k(f"v_mfma_f32_16x16x32_bf16 v[32:35], {vr(64+4*i,4)}, {vr(128+4*i,4)}, {'0' if i == 0 else 'v[32:35]'}")
    k("L_kvst:")
    epoch()
    k(f"""
    s_lshl1_add_u32 s10, s9, s15
    s_lshl_b32 s10, s10, 3
    s_add_u32 s10, s10, {FLKV}
    s_nop 1
    v_mul_f32 v32, s57, v32
    v_mul_f32 v33, s57, v33
    v_mul_f32 v34, s57, v34
    v_mul_f32 v35, s57, v35
    v_cvt_pk_bf16_f32 v32, v32, v33
    v_cvt_pk_bf16_f32 v33, v34, v35
    global_store_dwordx2 v19, v[32:33], {sp(WS)} sc1
    v_mov_b32 v20, s10
    v_mov_b32 v22, s{EP}
    v_mov_b32 v23, s{EP+1}
    """)
    stamp(k, 4)
    k(f"""
    s_waitcnt vmcnt(0)
    s_mov_b64 exec, 1
    global_store_dwordx2 v20, v[22:23], {sp(WS)} sc1
    s_mov_b64 exec, -1
    s_setprio 2
    """)
    stamp(k, 5)
    k("s_branch L_helper2")
    k(f"""
    L_helper:
    s_waitcnt lgkmcnt(0)
    """)
    epoch()
    k(f"""
    L_helper2:
    s_lshl_b32 s10, s8, 2
    s_load_dword s12, {sp(LDT)}, s10
    s_and_b32 s14, s3, 1                ; ch
    s_bfe_u32 s15, s3, 0x10001
    s_lshl_b32 s10, s8, 9
    s_lshl_b32 s11, s14, 8
    s_add_u32 s10, s10, s11
    s_lshl_b32 s11, s15, 7
    s_add_u32 s10, s10, s11
    v_lshlrev_b32 v7, 1, v1
    v_add_u32 v7, s10, v7
    global_load_ushort v16, v7, {sp(ARE)}
    global_load_ushort v17, v7, {sp(AIM)}
    global_load_ushort v18, v7, {sp(BRE)}
    global_load_ushort v19, v7, {sp(BIM)}
    global_load_ushort v20, v7, {sp(CRE)}
    global_load_ushort v21, v7, {sp(CIM)}
    s_waitcnt lgkmcnt(0)
    s_lshl_b32 s10, s14, 4
    s_lshr_b32 s10, s12, s10
    s_lshl_b32 s10, s10, 16
    v_mov_b32 v28, s10
    v_mul_f32 v28, {LOG2E}, v28
    v_exp_f32 v28, v28
    v_cvt_pk_bf16_f32 v28, v28, v28
    v_and_b32 v28, 0xffff0000, v28      ; dt
    s_mul_i32 s56, s14, {TCH}
    s_add_u32 s56, s56, {TAB}
    s_lshl_b32 s11, s15, 8
    s_add_u32 s10, s56, s11
    v_lshlrev_b32 v29, 2, v1
    v_add_u32 v29, s10, v29
    s_waitcnt vmcnt(0)
    """)
    for r in range(16, 22): k(f"v_lshlrev_b32 v{r}, 16, v{r}")
    k(f"""
    v_mul_f32 v16, v16, v28
    v_mul_f32 v17, v17, v28
    v_mul_f32 v16, {LOG2E}, v16
    v_mul_f32 v17, 0.15915494, v17
    """)
    direct(k, 32, 16, 17, "1.0", 30)
    direct(k, 38, 16, 17, "0x41000000", 30)
    direct(k, 40, 16, 17, "0x43800000", 30)
    cmul(k, 42, 20, 18, 30)
    k("v_mul_f32 v42, v42, v28\nv_mul_f32 v43, v43, v28")
    cmul(k, 34, 32, 32, 30)
    cmul(k, 36, 34, 34, 30)
    cmul(k, 48, 38, 38, 30)
    k(f"""
    s_and_b32 s9, s3, 3                 ; v
    v_and_b32 v60, 31, v1               ; cp
    s_lshl_b32 s10, s5, 6
    s_lshl4_add_u32 s10, s9, s10        ; 64slot + 16v
    v_lshl_add_u32 v61, v5, 3, s10      ; t0
    s_lshl_b32 s11, s4, 7
    v_lshl_add_u32 v60, v60, 2, s11
    v_lshl_add_u32 v62, v61, 10, v60
    v_add_u32 v62, 4096, v62
    v_lshlrev_b32 v63, 11, v60
    v_lshl_add_u32 v63, v61, 1, v63
    v_add_u32 v63, {UT}, v63
    """)
    stamp(k, 6)
    lds_wait(k, C_Q, 4, 30, 2)
    for e in range(8): k(f"global_load_dword v{64+e}, v62, {sp(U)} offset:{1024*e - 4096}")
    stamp(k, 7)
    k(f"""
    v_mov_b32 v50, 1.0
    v_mov_b32 v51, 0
    v_mov_b32 v52, v38
    v_mov_b32 v53, v39
    v_add_u32 v27, {32*ROW}, v29
    s_mov_b32 s10, 16
    L_ytab:
    v_cvt_pk_bf16_f32 v56, v50, v51
    v_cvt_pk_bf16_f32 v57, v52, v53
    ds_write2_b32 v27, v56, v57 offset0:0 offset1:{ROW//4}
    """)
    cmul(k, 50, 50, 48, 30)
    cmul(k, 52, 52, 48, 54)
    k(f"""
    v_add_u32 v27, {2*ROW}, v27
    s_sub_u32 s10, s10, 1
    s_cmp_lg_u32 s10, 0
    s_cbranch_scc1 L_ytab
    """)
    rows = {}
    def rowidx(r, h): return 8 * (r // 4) + 4 * h + r % 4
    for h in range(2):
        bases = [4*h + i for i in range(5)] + [256 + 4*h + i for i in (0, 2, 4)] + [512 + 256*h + i for i in (0, 4, 8)] + \
                [1024 + 256*h + i for i in (0, 8)] + [1536 + 256*h + i for i in (0, 8)]
        for r, b in enumerate(bases): rows.setdefault(b, []).append(rowidx(r, h))
    cnt = [0]
    def put(reg, base):
        t = 56 + cnt[0] % 4; cnt[0] += 1
        k(f"v_cvt_pk_bf16_f32 v{t}, v{reg}, -v{reg+1}")
        for ri in rows[base]: k(f"ds_write_b32 v29, v{t} offset:{ri*ROW}")
    steps = {0: (32, 1, 8), 1: (34, 2, 4), 2: (36, 4, 2), 3: (36, 4, 2), 4: (38, 8, 1), 5: (38, 8, 1), 6: (38, 8, 1), 7: (38, 8, 1)}
    for a in range(8):
        put(42, 256 * a)
        e, st, n = steps[a]
        for i in range(1, n + 1):
            cmul(k, 44, 42 if i == 1 else 44, e, 46)
            put(44, 256 * a + st * i)
        if a < 7: cmul(k, 42, 42, 40, 30)
    k(f"""
    ; T1 stores
    s_mov_b32 s10, 0x05040100
    s_mov_b32 s11, 0x07060302
    v_add_u32 v62, 4096, v63
    s_lshl2_add_u32 s12, s8, s9
    s_lshl_b32 s12, s12, 3
    s_add_u32 s12, s12, {FLU}
    v_mov_b32 v61, s12
    v_mov_b32 v22, s{EP}
    v_mov_b32 v23, s{EP+1}
    s_waitcnt vmcnt(0)
    """)
    for e in range(4):
        k(f"v_perm_b32 v{72+e}, v{65+2*e}, v{64+2*e}, s10")
        k(f"v_perm_b32 v{76+e}, v{65+2*e}, v{64+2*e}, s11")
    lds_wait(k, C_A, 4, 30, 2)
    k(f"""
    global_store_dwordx4 v63, v[72:75], {sp(WS)} sc1
    global_store_dwordx4 v62, v[76:79], {sp(WS)} sc1
    s_lshl1_add_u32 s10, s4, s15
    s_lshl_b32 s10, s10, 9
    s_add_u32 s10, s10, {FLU}
    v_lshl_add_u32 v24, v1, 3, s10
    s_lshl1_add_u32 s10, s8, s14
    s_lshl_b32 s10, s10, 12
    s_lshl_b32 s11, s15, 11
    s_add_u32 s10, s10, s11
    s_add_u32 s10, s10, {UT}
    v_add_u32 v25, s10, v6
    s_waitcnt vmcnt(0)
    s_mov_b64 exec, 1
    global_store_dwordx2 v61, v[22:23], {sp(WS)} sc1
    s_mov_b64 exec, -1
    """)
    hsync(k, 30)
    stamp(k, 8)
    k(f"""
    s_cmp_lg_u32 s15, 0
    s_cbranch_scc1 L_nokgen
    v_and_b32 v11, 31, v1
    v_mul_u32_u24 v30, {ROW}, v11
    v_lshl_add_u32 v30, v5, 4, v30
    v_add_u32 v30, s56, v30
    """)
    for kk in range(16):
        k(f"ds_read_b128 {vr(64+8*kk,4)}, v30 offset:{32*kk}")
        k(f"ds_read_b128 {vr(68+8*kk,4)}, v30 offset:{32*ROW+32*kk}")
        if kk >= 4:
            q = kk - 4
            k(f"s_waitcnt lgkmcnt(8)")
            k(f"v_mfma_f32_32x32x16_bf16 v[32:47], {vr(64+8*q,4)}, {vr(68+8*q,4)}, {'0' if q == 0 else 'v[32:47]'}")
    for q in range(12, 16):
        k(f"s_waitcnt lgkmcnt({2*(15-q)})")
        k(f"v_mfma_f32_32x32x16_bf16 v[32:47], {vr(64+8*q,4)}, {vr(68+8*q,4)}, v[32:47]")
    d = lambda r: f"v{32+r}"
    k(f"""
    v_lshlrev_b32 v12, 4, v11
    v_sub_u32 v12, s56, v12             ; E base - 16j
    v_lshlrev_b32 v13, 3, v5
    v_sub_u32 v13, v12, v13             ; - 8h
    v_lshlrev_b32 v14, 9, v5
    v_sub_u32 v14, v12, v14             ; - 512h
    v_and_b32 v15, 1, v1
    v_cmp_eq_u32 vcc, 0, v15
    """)
    pk = lambda dst, lo, hi: k(f"v_cvt_pk_bf16_f32 v{dst}, {lo}, {hi}")
    pk(64, d(4), d(3)); pk(65, d(2), d(1)); pk(66, d(3), d(2)); pk(67, d(1), d(0))
    k(f"ds_write_b64 v13, v[64:65] offset:{4080+8}")
    k(f"ds_write_b64 v13, v[66:67] offset:{KCP+4080+8}")
    pk(68, d(7), d(7)); pk(69, d(6), d(5)); pk(70, d(7), d(6)); pk(71, d(5), d(5))
    k(f"ds_write_b64 v13, v[68:69] offset:{4080+8-512}")
    k(f"ds_write_b64 v13, v[70:71] offset:{KCP+4080+8-512}")
    pk(72, d(10), d(10)); pk(73, d(10), d(9)); pk(74, d(9), d(9)); pk(75, d(8), d(8))
    pk(76, d(10), d(10)); pk(77, d(9), d(9)); pk(78, d(9), d(8)); pk(79, d(8), d(8))
    k(f"ds_write_b128 v14, v[72:75] offset:{4080-1024}")
    k(f"ds_write_b128 v14, v[76:79] offset:{KCP+4080-1024}")
    for (ra, blk, rb) in ((11, 4, 80), (13, 6, 88)):
        a, b = d(ra), d(ra + 1)
        k(f"v_cndmask_b32 v15, {b}, {a}, vcc")
        pk(rb, b, b); pk(rb+1, b, b); pk(rb+2, "v15", a); pk(rb+3, a, a)
        pk(rb+4, b, b); pk(rb+5, b, "v15"); pk(rb+6, a, a); pk(rb+7, a, a)
        k(f"ds_write_b128 v14, {vr(rb,4)} offset:{4080-512*blk}")
        k(f"ds_write_b128 v14, {vr(rb+4,4)} offset:{KCP+4080-512*blk}")
    k(f"""
    v_cvt_pk_bf16_f32 v12, {d(0)}, 0
    v_cmp_eq_u32 vcc, 0, v1
    v_mov_b32 v13, 0
    v_cndmask_b32 v12, v13, v12, vcc
    v_lshlrev_b32 v14, 2, v1
    v_add_u32 v14, s56, v14
    s_mov_b64 exec, 0xff
    ds_write_b32 v14, v12 offset:4096
    ds_write_b32 v14, v13 offset:{KCP+4096}
    s_mov_b64 exec, -1
    L_nokgen:
    ; ---- u image
    v_mov_b32 v36, 0
    v_mov_b32 v37, 0
    v_lshlrev_b32 v31, 3, v1
    v_add_u32 v31, {UIM}, v31
    s_mov_b32 exec_hi, 0x0fffffff
    ds_write_b64 v31, v[36:37]
    ds_write_b64 v31, v[36:37] offset:{UCH}
    s_mov_b64 exec, -1
    s_mul_i32 s10, s14, {UCH}
    s_lshl_b32 s11, s15, 11
    s_add_u32 s10, s10, s11
    s_add_u32 s10, s10, {UIM + 480}
    v_add_u32 v30, s10, v6
    """)
    gpoll(k, 24, 26)
    k(f"""
    global_load_dwordx4 v[16:19], v25, {sp(WS)} sc1
    global_load_dwordx4 v[20:23], v25, {sp(WS)} offset:1024 sc1
    """)
    k(f"""
    v_add_u32 v11, 1, v3
    v_and_b32 v11, 30, v11
    v_lshlrev_b32 v11, 1, v11
    v_lshlrev_b32 v12, 4, v4
    v_sub_u32 v11, v12, v11
    v_and_b32 v12, 1, v3
    v_mul_u32_u24 v12, {KCP}, v12
    v_add_u32 v11, v11, v12
    s_lshl_b32 s11, s15, 8
    s_sub_u32 s10, s56, s11
    s_add_u32 s10, s10, {4064 - 192 - 512}
    v_add_u32 v12, s10, v11
    v_subrev_u32 v13, 1024, v12
    v_subrev_u32 v14, 2048, v12
    v_subrev_u32 v15, 3072, v12
    v_lshlrev_b32 v11, 5, v3
    v_lshl_add_u32 v11, v4, 4, v11
    s_mul_i32 s10, s14, {UCH}
    s_sub_u32 s10, s10, s11
    s_add_u32 s10, s10, {UIM + 448 - 192}
    v_add_u32 v11, s10, v11
    s_waitcnt vmcnt(0)
    ds_write_b128 v30, v[16:19]
    ds_write_b128 v30, v[20:23] offset:1024
    """)
    hsync(k, 30)
    stamp(k, 9)
    ACC = 32; FB = [64, 128]
    def loads(mm, buf):
        L = []
        for i in range(8):
            p, ii = i // 2, i % 2
            o = (3 - mm) * 16 + (1 - ii) * 128
            L.append(f"ds_read_b128 {vr(buf+32+4*i,4)}, v11 offset:{512*i + (3-mm)*64}")
            L.append(f"ds_read2_b32 {vr(buf+4*i,2)}, v{12+p} offset0:{o} offset1:{o+1}")
            L.append(f"ds_read2_b32 {vr(buf+4*i+2,2)}, v{12+p} offset0:{o+2} offset1:{o+3}")
        return L
    for t in loads(0, FB[0]): k(t)
    for mm in range(4):
        buf = FB[mm % 2]
        nxt = loads(mm + 1, FB[(mm + 1) % 2]) if mm < 3 else []
        k("s_waitcnt lgkmcnt(0)")
        seen = set()
        for i in range(8):
            for ct in range(i, 8):
                c = "0" if (mm == 0 and ct not in seen) else vr(ACC + 4*ct, 4)
                seen.add(ct)
                k(f"v_mfma_f32_16x16x32_bf16 {vr(ACC+4*ct,4)}, {vr(buf+4*i,4)}, {vr(buf+32+4*(ct-i),4)}, {c}")
                if nxt: k(nxt.pop(0))
    k(f"""
    s_lshl_b32 s10, s15, 13
    s_add_u32 s10, s10, s56
    s_add_u32 s10, s10, {YPO}
    v_add_u32 v11, s10, v6
    """)
    for ct in range(8): k(f"ds_write_b128 v11, {vr(ACC+4*ct,4)} offset:{1024*ct}")
    k(f"""
    v_bfe_u32 v12, v1, 1, 4
    v_and_b32 v13, 1, v1
    v_lshl_add_u32 v12, v13, 5, v12
    v_lshlrev_b32 v12, 4, v12
    v_lshl_add_u32 v12, v5, 10, v12
    s_lshl_b32 s10, s15, 12
    s_add_u32 s10, s10, s56
    s_add_u32 s10, s10, {YPO}
    v_add_u32 v12, s10, v12
    v_add_u32 v25, {YT - UT}, v25
    s_lshl1_add_u32 s10, s4, s15
    s_lshl_b32 s10, s10, 5
    s_add_u32 s10, s10, s5
    s_lshl1_add_u32 s10, s10, s14
    s_lshl_b32 s10, s10, 3
    s_add_u32 s10, s10, {FLY}
    v_mov_b32 v20, s10
    v_mov_b32 v22, s{EP}
    v_mov_b32 v23, s{EP+1}
    """)
    hsync(k, 30)
    stamp(k, 10)
    for sx in range(2):
        for ds in range(2):
            for e in range(2):
                k(f"ds_read_b128 {vr(32+16*sx+8*ds+4*e,4)}, v12 offset:{ds*8192 + sx*2048 + e*256}")
    lds_signal(k, C_H); k.hs += 1
    for sx in range(2):
        b = 32 + 16*sx
        for i in range(8): k(f"v_add_f32 v{b+i}, v{b+i}, v{b+8+i}")
        for i in range(4): k(f"v_cvt_pk_bf16_f32 v{64+4*sx+i}, v{b+2*i}, v{b+2*i+1}")
        k(f"global_store_dwordx4 v25, {vr(64+4*sx,4)}, {sp(WS)} offset:{1024*sx} sc1")
    k(f"""
    s_waitcnt vmcnt(0)
    s_mov_b64 exec, 1
    global_store_dwordx2 v20, v[22:23], {sp(WS)} sc1
    s_mov_b64 exec, -1
    """)
    srd(k, SL, WO, 524288)
    k(f"""
    v_lshrrev_b32 v20, 3, v1
    v_and_b32 v21, 1, v4
    v_lshlrev_b32 v21, 2, v21
    v_and_b32 v22, 7, v1
    v_xor_b32 v21, v21, v22
    v_lshlrev_b32 v21, 4, v21
    v_lshl_add_u32 v16, v20, 10, v21
    v_add_u32 v17, {8192-1024}, v16
    v_add_u32 v18, {2*(8192-1024)}, v16
    v_add_u32 v19, {3*(8192-1024)}, v16
    s_lshl_b32 s10, s7, 7
    s_lshl_b32 s11, s9, 17
    s_add_u32 s10, s10, s11
    s_lshl_b32 s11, s9, 14
    s_add_u32 s11, s11, {WOI}
    """)
    lds_wait(k, C_H, 4 * k.hs, 30)
    for g in range(4):
        k(f"s_mov_b32 m0, s11\ns_add_u32 s11, s11, 4096")
        for j in range(4): k(f"buffer_load_dwordx4 v{16+j}, s[{SL}:{SL+3}], s10 offen offset:{1024*j} lds")
        if g < 3: k("s_add_u32 s10, s10, 32768")
    k("s_waitcnt vmcnt(0)")
    lds_signal(k, C_H); k.hs += 1
    WOHS = 4 * k.hs
    stamp(k, 11)
    k(f"""
    s_cmp_lg_u32 s15, 0
    s_cbranch_scc0 L_outp
    """)
    k(f"""
    L_red:
    s_xor_b32 s10, s15, 1
    s_lshl2_add_u32 s57, s10, s14
    s_add_u32 s58, s57, 4               ; stop
    L_redloop:
    s_lshl_b32 s10, s57, 4
    v_add_u32 v11, s10, v10
    L_redpoll:
    ds_read_b128 v[12:15], v11 offset:{C_P - CNT}
    s_waitcnt lgkmcnt(0)
    v_and_b32 v12, v12, v13
    v_and_b32 v14, v14, v15
    v_and_b32 v12, v12, v14
    v_readfirstlane_b32 s62, v12
    s_cmp_lg_u32 s62, 0
    s_cbranch_scc1 L_redgo
    s_sub_u32 s{SPIN}, s{SPIN}, 1
    s_cbranch_scc1 {END}
    s_sleep 2
    s_branch L_redpoll
    L_redgo:
    s_mul_i32 s10, s57, {4*PSL}
    v_add_u32 v11, s10, v6
    v_and_b32 v12, 31, v1
    v_lshlrev_b32 v12, 2, v12
    v_add_u32 v12, s10, v12
    """)
    for a in range(4):
        k(f"ds_read_b128 {vr(32+8*a,4)}, v11 offset:{PART + a*PSL}")
        k(f"ds_read_b128 {vr(36+8*a,4)}, v11 offset:{PART + a*PSL + 1024}")
        k(f"ds_read_b32 v{64+a}, v12 offset:{PART + a*PSL + 2048}")
    k(f"""
    s_lshl3_add_u32 s10, s6, s57
    s_lshl3_add_u32 s10, s10, s7
    s_lshl_b32 s11, s10, 10
    s_add_u32 s11, s11, {OFRAG}
    v_add_u32 v13, s11, v6
    s_lshl_b32 s10, s10, 3
    s_add_u32 s10, s10, {FLO}
    v_mov_b32 v14, s10
    v_mov_b32 v22, s{EP}
    v_mov_b32 v23, s{EP+1}
    s_waitcnt lgkmcnt(0)
    v_add_f32 v64, v64, v65
    v_add_f32 v66, v66, v67
    """)
    for i in range(8): k(f"v_add_f32 v{32+i}, v{32+i}, v{40+i}")
    k("v_add_f32 v64, v64, v66")
    for i in range(8): k(f"v_add_f32 v{48+i}, v{48+i}, v{56+i}")
    for i in range(8): k(f"v_add_f32 v{32+i}, v{32+i}, v{48+i}")
    k(f"""
    v_mov_b32 v65, 0x21800000
    v_mov_b32 v66, 0x5d800000
    v_cmp_nge_f32 vcc, v64, v65
    v_cmp_nle_f32 s[10:11], v64, v66
    s_or_b64 vcc, vcc, s[10:11]
    s_cbranch_scc1 L_fallback
    L_rednorm:
    v_rcp_f32 v64, v64
    """)
    for i in range(8): k(f"v_mul_f32 v{32+i}, v{32+i}, v64")
    for i in range(4): k(f"v_cvt_pk_bf16_f32 v{16+i}, v{32+2*i}, v{33+2*i}")
    k(f"""
    global_store_dwordx4 v13, v[16:19], {sp(WS)} sc1
    s_waitcnt vmcnt(0)
    s_mov_b64 exec, 1
    global_store_dwordx2 v14, v[22:23], {sp(WS)} sc1
    s_mov_b64 exec, -1
    s_add_u32 s57, s57, 2
    s_cmp_lt_u32 s57, s58
    s_cbranch_scc1 L_redloop
    """)
    stamp(k, 12)
    k(f"""
    s_cmp_lg_u32 s15, 0
    s_cbranch_scc1 L_t4
    s_cmp_lg_u32 s2, 0
    s_cbranch_scc1 {END}
    s_cmp_lg_u32 s3, 5
    s_cbranch_scc1 {END}
    v_mov_b32 v14, {ZOFF}
    s_mov_b64 exec, 1
    global_store_dwordx2 v14, v[22:23], {sp(WS)}
    s_mov_b64 exec, -1
    s_branch {END}
    """)
    k(f"""
    L_fallback:
    s_lshl_b32 s10, s57, 10
    s_add_u32 s10, s10, {QF}
    v_add_u32 v11, s10, v6
    ds_read_b128 v[16:19], v11
    v_mov_b32 v11, v6
    v_mov_b32 v12, 0xff800000
    s_mov_b32 s10, 64
    L_fb1:
    global_load_dwordx4 v[24:27], v11, {sp(WS)} sc1
    v_add_u32 v11, 1024, v11
    s_waitcnt vmcnt(0) lgkmcnt(0)
    v_mfma_f32_32x32x16_bf16 v[64:79], v[24:27], v[16:19], 0
    s_sub_u32 s10, s10, 1
    s_cmp_lg_u32 s10, 0
    """)
    for i in range(8): k(f"v_max3_f32 v12, v{64+2*i}, v{65+2*i}, v12")
    k(f"""
    s_cbranch_scc1 L_fb1
    v_mov_b32 v15, v12
    v_permlane32_swap_b32 v12, v15
    v_max_f32 v12, v12, v15
    """)
    for i in range(16): k(f"v_sub_f32 v{80+i}, 0, v12")
    for i in range(16): k(f"v_mov_b32 v{32+i}, 0")
    for i in range(8): k(f"v_mov_b32 v{96+i}, 0x3f803f80")
    k(f"""
    v_mov_b32 v15, 0xdddddddd
    v_mov_b32 v11, v6
    v_lshlrev_b32 v12, 9, v5
    v_lshl_add_u32 v12, v3, 4, v12
    v_add_u32 v12, {VIMG}, v12
    s_mov_b32 s10, 64
    L_fb2:
    global_load_dwordx4 v[24:27], v11, {sp(WS)} sc1
    s_mov_b32 exec_lo, 0xffff
    s_mov_b32 exec_hi, 0xffff
    global_load_dwordx4 v[96:99], v12, {sp(WS)} sc1
    global_load_dwordx4 v[100:103], v12, {sp(WS)} offset:256 sc1
    s_mov_b64 exec, -1
    v_add_u32 v11, 1024, v11
    v_add_u32 v12, 1024, v12
    s_waitcnt vmcnt(0)
    v_mfma_f32_32x32x16_bf16 v[64:79], v[24:27], v[16:19], v[80:95]
    s_sub_u32 s10, s10, 1
    s_cmp_lg_u32 s10, 0
    """)
    for i in range(16): k(f"v_exp_f32 v{64+i}, v{64+i}")
    k(f"""
    v_smfmac_f32_32x32x32_bf16 v[32:47], v[96:99], v[64:71], v15
    v_smfmac_f32_32x32x32_bf16 v[32:47], v[100:103], v[72:79], v15
    s_nop 7
    s_nop 7
    s_cbranch_scc1 L_fb2
    v_mov_b32 v64, v40
    s_branch L_rednorm
    """)
    k(f"""
    L_outp:
    v_lshrrev_b32 v20, 2, v3
    v_lshl_add_u32 v20, v5, 2, v20
    v_lshlrev_b32 v20, 7, v20
    v_lshrrev_b32 v21, 3, v3
    v_xor_b32 v21, s14, v21
    v_lshl_add_u32 v20, v21, 6, v20
    v_and_b32 v21, 1, v4
    v_lshl_add_u32 v20, v21, 5, v20
    v_and_b32 v21, 3, v1
    v_lshl_add_u32 v20, v21, 3, v20
    v_add_u32 v20, {WOI}, v20
    s_lshl1_add_u32 s10, s6, s15        ; 2qb+qh
    s_lshl_b32 s11, s10, 15
    s_add_u32 s11, s11, {OFRAG + 4096}
    v_add_u32 v21, s11, v6
    s_lshl_b32 s11, s10, 8
    s_add_u32 s11, s11, {FLO}
    v_and_b32 v24, 7, v1
    v_lshlrev_b32 v24, 3, v24
    v_add_u32 v24, s11, v24
    """)
    for i in range(8): k(f"v_mov_b64 {vr(32+2*i,2)}, 0")
    lds_wait(k, C_H, WOHS, 30)
    k(f"""
    s_mov_b32 s57, 4
    L_oploop:
    """)
    for p in range(8):
        k(f"ds_read_b64_tr_b16 {vr(96+4*p,2)}, v20 offset:{p*8192}")
        k(f"ds_read_b64_tr_b16 {vr(98+4*p,2)}, v20 offset:{p*8192+1024}")
    k(f"""
    L_oppoll:
    global_load_dwordx2 v[26:27], v24, {sp(WS)} sc1
    s_waitcnt vmcnt(0)
    v_cmp_ne_u64 vcc, {sp(EP)}, v[26:27]
    s_cbranch_vccz L_opgo
    s_sub_u32 s{SPIN}, s{SPIN}, 1
    s_cbranch_scc1 {END}
    s_sleep 2
    s_branch L_oppoll
    L_opgo:
    """)
    for p in range(8): k(f"global_load_dwordx4 {vr(64+4*p,4)}, v21, {sp(WS)} offset:{1024*p - 4096} sc1")
    k(f"""
    v_add_u32 v20, 2048, v20
    v_add_u32 v21, 8192, v21
    v_add_u32 v24, 64, v24
    s_sub_u32 s57, s57, 1
    s_waitcnt lgkmcnt(0)
    """)
    for p in range(8):
        k(f"s_waitcnt vmcnt({7-p})")
        k(f"v_mfma_f32_32x32x16_bf16 v[32:47], {vr(96+4*p,4)}, {vr(64+4*p,4)}, v[32:47]")
    k(f"""
    s_cmp_lg_u32 s57, 0
    s_cbranch_scc1 L_oploop
    v_and_b32 v11, 31, v1
    v_lshlrev_b32 v11, 11, v11
    v_lshl_add_u32 v11, v5, 4, v11
    s_lshl_b32 s10, s10, 16
    s_lshl_b32 s11, s7, 7
    s_add_u32 s10, s10, s11
    s_lshl_b32 s11, s14, 6
    s_add_u32 s10, s10, s11
    v_add_u32 v11, s10, v11
    """)
    for i in range(8): k(f"v_cvt_pk_bf16_f32 v{16+i}, v{32+2*i}, v{33+2*i}")
    k(f"""
    v_permlane32_swap_b32 v16, v18
    v_permlane32_swap_b32 v17, v19
    v_permlane32_swap_b32 v20, v22
    v_permlane32_swap_b32 v21, v23
    global_store_dwordx4 v11, v[16:19], {sp(OUT)} offset:1024
    global_store_dwordx4 v11, v[20:23], {sp(OUT)} offset:1056
    """)
    stamp(k, 13)
    k(f"""
    s_cmp_lg_u32 s15, 0
    s_cbranch_scc1 {END}
    L_t4:
    v_and_b32 v16, 31, v1               ; cp
    s_lshl_b32 s10, s5, 6
    s_lshl4_add_u32 s10, s9, s10        ; 64slot + 16v
    v_lshl_add_u32 v17, v5, 3, s10      ; t0
    s_lshl_b32 s11, s4, 7
    v_lshl_add_u32 v18, v16, 2, s11
    global_load_dword v24, v18, {sp(DSK)}
    v_lshl_add_u32 v19, v17, 10, v18
    v_add_u32 v19, 4096, v19
    """)
    for e in range(8): k(f"global_load_dword v{32+e}, v19, {sp(U)} offset:{1024*e - 4096}")
    k(f"""
    v_lshlrev_b32 v20, 11, v18
    v_lshl_add_u32 v20, v17, 1, v20
    v_add_u32 v20, {YT}, v20
    v_add_u32 v21, 4096, v20
    v_lshl_add_u32 v19, v17, 11, v18
    v_add_u32 v19, 4096, v19
    v_add_u32 v25, 8192, v19
    s_lshr_b32 s10, s5, 4
    s_lshl1_add_u32 s10, s4, s10
    s_lshl_b32 s10, s10, 9
    s_add_u32 s10, s10, {FLY}
    v_lshl_add_u32 v22, v1, 3, s10
    """)
    gpoll(k, 22, 26)
    k(f"""
    global_load_dwordx4 v[40:43], v20, {sp(WS)} sc1
    global_load_dwordx4 v[44:47], v21, {sp(WS)} sc1
    v_lshlrev_b32 v22, 16, v24
    v_and_b32 v23, 0xffff0000, v24
    """)
    for e in range(8):
        k(f"""
        v_lshlrev_b32 v12, 16, v{32+e}
        v_and_b32 v13, 0xffff0000, v{32+e}
        v_mul_f32 v12, v22, v12
        v_mul_f32 v13, v23, v13
        v_cvt_pk_bf16_f32 v{32+e}, v12, v13
        """)
    k("s_waitcnt vmcnt(0)")
    for e in range(8):
        ex = (lambda d, r: f"v_lshlrev_b32 v{d}, 16, v{r}") if e % 2 == 0 else (lambda d, r: f"v_and_b32 v{d}, 0xffff0000, v{r}")
        k(ex(12, 40 + e//2)); k(ex(13, 44 + e//2))
        k(f"""
        v_lshlrev_b32 v14, 16, v{32+e}
        v_and_b32 v15, 0xffff0000, v{32+e}
        v_add_f32 v12, v12, v14
        v_add_f32 v13, v13, v15
        v_cvt_pk_bf16_f32 v{48+e}, v12, v13
        global_store_dword v{19 if e < 4 else 25}, v{48+e}, {sp(OUT)} offset:{2048*(e%4) - 4096}
        """)
    k(f"""
    s_cmp_lg_u32 s15, 0
    s_cbranch_scc1 L_outp
    s_branch L_red
    """)
    QR, OA, SX_, SY_, KR, VR = 12, 16, 32, 48, 64, 128
    k(f"""
    L_attn:
    s_mov_b32 vcc_lo, 0x00110011
    s_mov_b32 vcc_hi, 0x00110011
    v_mov_b32 v12, 0x3f803f80
    v_cndmask_b32 v12, 0, v12, vcc
    v_mov_b32 v13, v12
    """)
    for t in range(16):
        for i in range(2): k(f"v_mov_b64 {vr(VR+8*t+4+2*i,2)}, v[12:13]")
    k(f"""
    s_and_b32 s9, s3, 1                 ; qh
    s_lshr_b32 s10, s3, 1               ; nt
    v_and_b32 v11, 31, v1
    s_lshl_b32 s12, s9, 5
    v_add_u32 v11, s12, v11             ; row
    v_xor_b32 v12, v5, v3
    v_lshlrev_b32 v12, 4, v12
    v_lshl_add_u32 v32, v11, 8, v12
    """)
    for j in range(1, 8): k(f"v_xor_b32 v{32+j}, {32*j}, v32")
    k(f"""
    v_lshrrev_b32 v40, 2, v3
    v_lshl_add_u32 v40, v5, 3, v40
    v_lshlrev_b32 v40, 7, v40
    v_lshrrev_b32 v41, 3, v3
    v_xor_b32 v41, s10, v41
    v_lshl_add_u32 v40, v41, 6, v40
    v_and_b32 v41, 1, v4
    v_lshl_add_u32 v40, v41, 5, v40
    v_and_b32 v41, 3, v1
    v_lshl_add_u32 v40, v41, 3, v40
    v_add_u32 v40, 16384, v40
    """)
    for i in range(8): k(f"v_mov_b64 {vr(OA+2*i,2)}, 0")
    k(f"""
    s_waitcnt lgkmcnt(0)
    s_load_dwordx2 {sp(EP)}, {sp(WS)}, {ZOFF}
    s_barrier
    """)
    stamp(k, 2)
    k(f"""
    s_mov_b32 s13, 1
    L_qloop:
    ds_read_b128 v[44:47], v10
    s_waitcnt lgkmcnt(0)
    v_lshlrev_b32 v46, 2, v46
    v_min3_u32 v42, v44, v45, v46
    v_readfirstlane_b32 s62, v42
    s_cmp_ge_u32 s62, s13
    s_cbranch_scc1 L_qgo
    s_sub_u32 s{SPIN}, s{SPIN}, 1
    s_cbranch_scc1 {END}
    s_sleep 1
    s_branch L_qloop
    L_qgo:
    """)
    for j in range(8):
        k(f"ds_read_b128 {vr(64+8*j,4)}, v{32+j}")
        k(f"ds_read_b64_tr_b16 {vr(68+8*j,2)}, v40 offset:{j*2048}")
        k(f"ds_read_b64_tr_b16 {vr(70+8*j,2)}, v40 offset:{j*2048+512}")
        if j >= 3:
            q = j - 3
            k(f"s_waitcnt lgkmcnt(9)")
            k(f"v_mfma_f32_32x32x16_bf16 {vr(OA,16)}, {vr(68+8*q,4)}, {vr(64+8*q,4)}, {vr(OA,16)}")
    for q in range(5, 8):
        k(f"s_waitcnt lgkmcnt({3*(7-q)})")
        k(f"v_mfma_f32_32x32x16_bf16 {vr(OA,16)}, {vr(68+8*q,4)}, {vr(64+8*q,4)}, {vr(OA,16)}")
    for j in range(9): k(f"v_add_u32 v{32+j}, 0x8000, v{32+j}")
    k(f"""
    s_add_u32 s13, s13, 1
    s_cmp_le_u32 s13, 4
    s_cbranch_scc1 L_qloop
    """)
    stamp(k, 3)
    epoch()
    k(f"""
    s_lshl_b32 s12, s3, 9
    s_add_u32 s12, s12, {FLKV}
    v_lshlrev_b32 v11, 3, v1
    v_add_u32 v11, s12, v11
    global_load_dwordx2 v[42:43], v11, {sp(WS)} sc1
    s_lshl1_add_u32 s12, s9, s10
    s_lshl_b32 s12, s12, 11
    s_add_u32 s12, s12, {QF}
    v_add_u32 v12, s12, v6
    """)
    for i in range(8): k(f"v_cvt_pk_bf16_f32 v{32+i}, v{OA+2*i}, v{OA+2*i+1}")
    k(f"""
    ds_write_b128 v12, v[32:35]
    ds_write_b128 v12, v[36:39] offset:1024
    """)
    lds_signal(k, C_Q)
    k(f"""
    s_lshl_b32 s12, s3, 14
    s_add_u32 s12, s12, 4096
    v_add_u32 v0, s12, v6
    v_add_u32 v3, {VIMG}, v0            ; V addr
    v_add_u32 v4, 8192, v0
    v_add_u32 v5, 8192, v3
    v_add_u32 v7, {QF}, v6
    s_mul_i32 s12, s3, {PSL}
    v_add_u32 v8, s12, v6
    v_and_b32 v2, 31, v1
    v_lshlrev_b32 v2, 2, v2
    v_add_u32 v2, s12, v2
    """)
    for i in range(8): k(f"v_mov_b64 {vr(OA+2*i,2)}, 0")
    lds_wait(k, C_Q, 4, 44)
    k(f"""
    ds_read_b128 {vr(QR,4)}, v7
    s_branch L_kvchk
    L_kvpoll:
    s_sub_u32 s{SPIN}, s{SPIN}, 1
    s_cbranch_scc1 {END}
    s_sleep 1
    global_load_dwordx2 v[42:43], v11, {sp(WS)} sc1
    L_kvchk:
    s_waitcnt vmcnt(0)
    v_cmp_ne_u64 vcc, {sp(EP)}, v[42:43]
    s_cbranch_vccnz L_kvpoll
    """)
    stamp(k, 4)
    PRE = 6
    def kvload(t):
        k(f"global_load_dwordx4 {vr(KR+4*t,4)}, v{0 if t < 8 else 4}, {sp(WS)} offset:{1024*(t%8) - 4096} sc1")
        k(f"global_load_dwordx4 {vr(VR+8*t,4)}, v{3 if t < 8 else 5}, {sp(WS)} offset:{1024*(t%8) - 4096} sc1")
    for t in range(PRE): kvload(t)
    k("v_mov_b32 v11, 0xdddddddd")
    stamp(k, 5)
    k(f"""
    s_waitcnt vmcnt({2*PRE-1}) lgkmcnt(0)
    v_mfma_f32_32x32x16_bf16 {vr(SX_,16)}, {vr(KR,4)}, {vr(QR,4)}, 0
    """)
    stamp(k, 6)
    def flush():
        k(f"""
        ds_write_b128 v8, {vr(OA,4)} offset:{PART}
        ds_write_b128 v8, {vr(OA+4,4)} offset:{PART+1024}
        ds_write_b32 v2, v{OA+8} offset:{PART+2048}
        ds_write_b32 v10, v9 offset:{C_P - CNT}
        """)
    def rowpass(first):
        for t in range(16):
            Xb, Yb = (SX_, SY_) if t % 2 == 0 else (SY_, SX_)
            e = lambda i: k(f"v_exp_f32 v{Xb+i}, v{Xb+i}")
            if first and t + PRE < 16: kvload(t + PRE)
            if first and t + PRE == 16:
                k(f"s_mov_b64 exec, 1\nds_add_u32 v10, v9 offset:{C_A - CNT}\ns_mov_b64 exec, -1")
                k("s_lshl_b32 s12, s3, 2\nv_add_u32 v10, s12, v10")
            e(0); e(1)
            if not (first and t == 0):
                k(f"v_smfmac_f32_32x32x32_bf16 {vr(OA,16)}, {vr(VR+8*((t-1)%16)+4,4)}, {vr(Yb+8,8)}, v11")
            e(2); e(3); e(4)
            if first:
                issued = 2 * min(16, t + PRE + 1)
                needed = 2 * (t + 1) + 1 if t < 15 else 32
                k(f"s_waitcnt vmcnt({issued - needed})")
            if t == 15: k("s_waitcnt lgkmcnt(0)")
            k(f"v_mfma_f32_32x32x16_bf16 {vr(Yb,16)}, {vr(KR+4*((t+1)%16),4)}, {vr(QR,4)}, 0")
            if t == 14:
                k(f"v_add_u32 v7, 1024, v7")
                k(f"ds_read_b128 {vr(QR,4)}, v7")
            if first:
                for i in range(4): k(f"v_permlane16_swap_b32 v{VR+8*t+i}, v{VR+8*t+4+i}")
            pva = f"v_smfmac_f32_32x32x32_bf16 {vr(OA,16)}, {vr(VR+8*t,4)}, {vr(Xb,8)}, v11"
            if t == 0 and not first:
                for i in range(5, 13): e(i)
                flush()
                for i in range(5): k(f"v_mov_b64 {vr(OA+2*i,2)}, 0")
                e(13); e(14); k(pva); e(15)
            else:
                for i in range(5, 10): e(i)
                k(pva)
                for i in range(10, 16): e(i)
                if t == 1 and not first:
                    k(f"v_add_u32 v8, {4*PSL}, v8\nv_add_u32 v2, {4*PSL}, v2\nv_add_u32 v10, 16, v10")
    rowpass(True)
    stamp(k, 7)
    k("s_mov_b32 s13, 7\n.p2align 6\nL_aloop:")
    rowpass(False)
    k(f"""
    s_sub_u32 s13, s13, 1
    s_cmp_lg_u32 s13, 0
    s_cbranch_scc1 L_aloop
    v_smfmac_f32_32x32x32_bf16 {vr(OA,16)}, {vr(VR+8*15+4,4)}, {vr(SY_+8,8)}, v11
    """)
    flush()
    stamp(k, 8)
    k(f"{END}:")
    stamp_flush(k)
    k("L_exit:\ns_endpgm")
    return k

def main(path):
    k = gen()
    out = HDR
    out += f"; @launch grid=(256,1,1) block=(512,1,1) lds={LDS}\n"
    out += '.amdgcn_target "amdgcn-amd-amdhsa--gfx950"\n'
    t, kd = k.finish(256, 102, accum=256)
    out += t + kd
    print(k.name, k.info, "lds", LDS)
    open(path, "w").write(out)

if __name__ == "__main__":
    if len(sys.argv) > 2: STAMP = True
    main(sys.argv[1] if len(sys.argv) > 1 else "cdna_kernels/%s.s" % NAME)
```
